```python
import torch

def _softmax(x, axis=-1):
    return torch.softmax(x, dim=axis)
def _gelu(x):
    return torch.nn.functional.gelu(x, approximate="tanh")
def _silu(x):
    return torch.nn.functional.silu(x)
def _sigmoid(x):
    return torch.sigmoid(x)
def _layernorm(x, axis=-1, eps=1e-5):
    m = x.mean(dim=axis, keepdim=True)
    v = x.var(dim=axis, keepdim=True, unbiased=False)
    return (x - m) / torch.sqrt(v + eps)
def _scatter_add(tgt, idx, src, axis=0):
    return tgt.clone().index_add_(axis, idx, src)
def _segment_sum(src, seg, n):
    out = torch.zeros((n,) + src.shape[1:], dtype=src.dtype)
    return out.index_add_(0, seg, src)
def _pad(x, pw):
    flat = tuple(v for pair in reversed(pw) for v in pair)
    return torch.nn.functional.pad(x, flat)

kernel_name = 'sequential_preLN__sliding_local_dilated__swiglu_ffn__prompt'

def setup_inputs():

    _w = (lambda a: (lambda t: t.to(torch.bfloat16) if t.is_floating_point() else t)(torch.as_tensor(a)))
    def _A_setup():
        B, S, D = 1, 2048, 448
        return {
            "x": _w((lambda *s: torch.randn(*s, dtype=torch.bfloat16) * 0.05)(B, S, D)),
            "wqkv": _w((lambda *s: torch.randn(*s, dtype=torch.bfloat16) * 0.05)(D, 3 * D)),
            "wo": _w((lambda *s: torch.randn(*s, dtype=torch.bfloat16) * 0.05)(D, D)),
        }
    _A_in = _A_setup()

    def _B_setup():
        B, S, D, F = 1, 2048, 448, 1792
        return {
            "x": _w((lambda *s: torch.randn(*s, dtype=torch.bfloat16) * 0.05)(B, S, D)),
            "w_gate": _w((lambda *s: torch.randn(*s, dtype=torch.bfloat16) * 0.05)(D, F)),
            "w_up": _w((lambda *s: torch.randn(*s, dtype=torch.bfloat16) * 0.05)(D, F)),
            "w_down": _w((lambda *s: torch.randn(*s, dtype=torch.bfloat16) * 0.05)(F, D)),
        }
    _B_in = _B_setup()

    return {
        "A_x": _A_in["x"],
        "A_wqkv": _A_in["wqkv"],
        "A_wo": _A_in["wo"],
        "B_x": _B_in["x"],
        "B_w_gate": _B_in["w_gate"],
        "B_w_up": _B_in["w_up"],
        "B_w_down": _B_in["w_down"],
    }

def reference(A_x, A_wqkv, A_wo, B_x, B_w_gate, B_w_up, B_w_down):
    def _A_ref(x, wqkv, wo):
        B, S, D = x.shape
        H = 16; Dh = D // H
        W, dil = 8, 2
        qkv = (lambda x, *d: x.permute(*d))((x @ wqkv).reshape(B, S, 3, H, Dh), 2, 0, 3, 1, 4)
        q, k, v = qkv[0], qkv[1], qkv[2]
        scale = Dh ** -0.5
        pos = torch.arange(S)
        off = torch.arange(W) * dil
        idx = pos[:, None] - off[None, :]
        mask = idx >= 0
        idx_c = torch.where(mask, idx, 0).reshape(-1)
        kg = k[:, :, idx_c, :].reshape(B, H, S, W, Dh)
        vg = v[:, :, idx_c, :].reshape(B, H, S, W, Dh)
        logits = torch.einsum("bhsd,bhswd->bhsw", q, kg) * scale
        logits = torch.where(mask[None, None, :, :], logits, -1e9)
        attn = _softmax(logits, axis=-1)
        o = torch.einsum("bhsw,bhswd->bhsd", attn, vg)
        return (lambda x, *d: x.permute(*d))(o, 0, 2, 1, 3).reshape(B, S, D) @ wo

    def _B_ref(x, w_gate, w_up, w_down):
        g = _silu(x @ w_gate)
        u = x @ w_up
        return (g * u) @ w_down

    x = A_x
    h = x + _A_ref(_layernorm(x, axis=-1), A_wqkv, A_wo)
    h2 = h + _B_ref(_layernorm(h, axis=-1), B_w_gate, B_w_up, B_w_down)
    return h2
```

```python
import sys

S_ROWS, D, F = 2048, 448, 1792
NQKV = 3 * D
WS_QKV = 0x0
WS_O = 0x600000
WS_H = 0x800000
WS_ACT = 0xA00000

out = []
def E(s=""):
    out.append(s)

def srd(dst, lo, hi, size):
    E(f"    s_mov_b32 s{dst}, s{lo}")
    E(f"    s_and_b32 s{dst+1}, s{hi}, 0xffff")
    E(f"    s_mov_b32 s{dst+2}, {size}")
    E(f"    s_mov_b32 s{dst+3}, 0x00020000")

def srd_ws(dst, wslo, wshi, off, size):
    E(f"    s_add_u32 s{dst}, s{wslo}, {off}")
    E(f"    s_addc_u32 s{dst+1}, s{wshi}, 0")
    E(f"    s_and_b32 s{dst+1}, s{dst+1}, 0xffff")
    E(f"    s_mov_b32 s{dst+2}, {size}")
    E(f"    s_mov_b32 s{dst+3}, 0x00020000")

def kernel_begin(name):
    E(f".globl {name}")
    E(".p2align 8")
    E(f".type {name},@function")
    E(f"{name}:")

def kernel_desc(name, nvgpr, accum_offset, nsgpr=102):
    E('.section .rodata,"a"')
    E(".p2align 6")
    E(f".amdhsa_kernel {name}")
    E(f"  .amdhsa_next_free_vgpr {nvgpr}")
    E(f"  .amdhsa_next_free_sgpr {nsgpr}")
    E(f"  .amdhsa_accum_offset {accum_offset}")
    E("  .amdhsa_group_segment_fixed_size 0")
    E("  .amdhsa_kernarg_size 80")
    E("  .amdhsa_user_sgpr_count 2")
    E("  .amdhsa_user_sgpr_kernarg_segment_ptr 1")
    E("  .amdhsa_system_sgpr_workgroup_id_x 1")
    E(".end_amdhsa_kernel")
    E(".text")

def div_const(dst, src, d, maxv, tmp_s):
    if d & (d - 1) == 0:
        E(f"    v_lshrrev_b32 v{dst}, {d.bit_length()-1}, v{src}")
        return
    sh = 20
    M = (1 << sh) // d + 1
    for x in range(maxv):
        assert (x * M) >> sh == x // d, (x, d)
    assert maxv * M < (1 << 32)
    E(f"    s_mov_b32 s{tmp_s}, {M}")
    E(f"    v_mul_lo_u32 v{dst}, v{src}, s{tmp_s}")
    E(f"    v_lshrrev_b32 v{dst}, {sh}, v{dst}")

class Gemm:
    def __init__(self, name, K, KC, wsrcs, waves_m, waves_n, tiles_per_src, ln, epi,
                 xsrc, x_ld, n_mb, n_nb, S):
        self.__dict__.update(locals())

def gen_gemm(g):
    name = g.name
    K, KC = g.K, g.KC
    nsrc = len(g.wsrcs)
    tps = g.tiles_per_src
    NT = tps * 32
    ntile_wg = nsrc * tps
    assert ntile_wg % g.waves_n == 0
    tpw = ntile_wg // g.waves_n
    assert tps % g.waves_n == 0
    MT = 32 * g.waves_m
    S = g.S
    nwg = g.n_mb * g.n_nb
    nchunks = K // KC
    ksteps_c = KC // 16
    fullx = (K == 448)
    ppr = NT * 2 // 16
    pieces = KC * ppr
    assert pieces % 256 == 0
    lpt = pieces // 256
    nst = lpt * nsrc
    bufbytes = KC * S
    XB = 16
    nx = 112 if fullx else 2 * ksteps_c * 4
    WF = XB + nx
    DEPTH = 4
    ST = WF + DEPTH * 4
    VEND = ST + nst * 4
    TMP = VEND
    VEND2 = TMP + 24
    acc_off = (VEND2 + 3) // 4 * 4
    nacc = tpw * 16
    def acc(j, r):
        return f"a{j*16+r}"
    def accr(j):
        return f"a[{j*16}:{j*16+15}]"

    kernel_begin(name)
    E(f"    s_cmp_ge_u32 s2, {nwg}")
    E(f"    s_cbranch_scc1 {name}_done")
    E("    s_load_dwordx4 s[4:7], s[0:1], 0")
    E("    s_load_dwordx4 s[8:11], s[0:1], 16")
    E("    s_load_dwordx4 s[12:15], s[0:1], 32")
    E("    s_load_dwordx4 s[16:19], s[0:1], 48")
    E("    s_load_dwordx2 s[20:21], s[0:1], 72")
    E(f"    s_mov_b32 s22, {(1<<32)//g.n_nb + 1}")
    E("    s_mul_hi_u32 s23, s2, s22")
    E(f"    s_mul_i32 s24, s23, {g.n_nb}")
    E("    s_sub_u32 s24, s2, s24")
    E("    v_and_b32 v1, 63, v0")
    E("    v_lshrrev_b32 v2, 6, v0")
    E("    s_waitcnt lgkmcnt(0)")
    ptr = {'x': (4, 5, S_ROWS*D*2, None), 'wqkv': (6, 7, D*NQKV*2, None), 'wo': (8, 9, D*D*2, None),
           'wg': (12, 13, D*F*2, None), 'wu': (14, 15, D*F*2, None), 'wd': (16, 17, F*D*2, None),
           'out': (18, 19, S_ROWS*D*2, None),
           'qkv': (20, 21, S_ROWS*NQKV*2, WS_QKV), 'o': (20, 21, S_ROWS*D*2, WS_O),
           'h': (20, 21, S_ROWS*D*2, WS_H), 'act': (20, 21, S_ROWS*F*2, WS_ACT)}
    def mk(dst, key):
        lo, hi, size, off = ptr[key]
        if off is None:
            srd(dst, lo, hi, size)
        else:
            srd_ws(dst, lo, hi, off, size)
    mk(28, g.xsrc)
    for i, w in enumerate(g.wsrcs):
        mk(32 + 4*i, w[0])
    mk(40, g.epi['dst'])
    if 'res' in g.epi:
        mk(44, g.epi['res'])
    E(f"    v_lshrrev_b32 v3, {g.waves_n.bit_length()-1}, v2")
    E(f"    v_and_b32 v4, {g.waves_n-1}, v2")
    E(f"    s_mul_i32 s25, s23, {MT}")
    E("    v_and_b32 v5, 31, v1")
    E("    v_lshl_add_u32 v5, v3, 5, v5")
    E("    v_add_u32 v5, s25, v5")
    E(f"    s_mov_b32 s26, {g.x_ld}")
    E("    v_mul_lo_u32 v6, v5, s26")
    E("    v_lshrrev_b32 v7, 5, v1")
    E("    v_lshl_add_u32 v6, v7, 4, v6")
    E("    v_bfe_u32 v8, v1, 2, 2")
    E("    v_lshl_add_u32 v8, v7, 3, v8")
    E(f"    s_mov_b32 s26, {S}")
    E("    v_mul_lo_u32 v8, v8, s26")
    E("    v_bfe_u32 v9, v1, 4, 1")
    E("    v_lshlrev_b32 v9, 5, v9")
    E("    v_and_b32 v10, 3, v1")
    E("    v_lshl_add_u32 v9, v10, 3, v9")
    E("    v_add_u32 v8, v8, v9")
    tpsw = tps // g.waves_n
    E(f"    v_mul_u32_u24 v9, {64*tpsw}, v4")
    E("    v_add_u32 v8, v8, v9")
    GOFF = TMP
    LOFF = TMP + 8
    assert lpt <= 8
    for i in range(lpt):
        E(f"    v_add_u32 v12, {256*i}, v0")
        div_const(13, 12, ppr, 256*lpt, 26)
        E(f"    s_mov_b32 s26, {ppr}")
        E("    v_mul_lo_u32 v14, v13, s26")
        E("    v_sub_u32 v14, v12, v14")
        E(f"    s_mov_b32 s26, {g.wsrcs[0][1]}")
        E(f"    v_mul_lo_u32 v{GOFF+i}, v13, s26")
        E(f"    v_lshl_add_u32 v{GOFF+i}, v14, 4, v{GOFF+i}")
        E(f"    s_mov_b32 s26, {S}")
        E(f"    v_mul_lo_u32 v{LOFF+i}, v13, s26")
        E(f"    v_lshl_add_u32 v{LOFF+i}, v14, 4, v{LOFF+i}")
    E(f"    s_mul_i32 s27, s24, {NT*2}")
    for i in range(lpt):
        E(f"    v_add_u32 v{GOFF+i}, s27, v{GOFF+i}")
    ldw = g.wsrcs[0][1]

    def stage_load(c):
        E(f"    s_mov_b32 s48, {c*KC*ldw}")
        for si in range(nsrc):
            for i in range(lpt):
                r = ST + (si*lpt + i)*4
                E(f"    buffer_load_dwordx4 v[{r}:{r+3}], v{GOFF+i}, s[{32+4*si}:{35+4*si}], s48 offen")
    def stage_write(c):
        b = (c & 1) * bufbytes
        for si in range(nsrc):
            for i in range(lpt):
                r = ST + (si*lpt + i)*4
                E(f"    ds_write_b128 v{LOFF+i}, v[{r}:{r+3}] offset:{b + si*NT*2}")

    stage_load(0)
    def xload(c):
        base = XB + (c & 1) * ksteps_c * 4
        E(f"    s_mov_b32 s49, {c*KC*2}")
        for s in range(ksteps_c):
            E(f"    buffer_load_dwordx4 v[{base+4*s}:{base+4*s+3}], v6, s[28:31], s49 offen offset:{32*s}")
    if fullx:
        for s in range(28):
            E(f"    buffer_load_dwordx4 v[{XB+4*s}:{XB+4*s+3}], v6, s[28:31], 0 offen offset:{32*s}")
    else:
        xload(0)
    for r in range(nacc):
        E(f"    v_accvgpr_write_b32 a{r}, 0")
    if fullx:
        E("    s_waitcnt vmcnt(0)")
        if g.ln:
            layernorm_regs(XB, 112)
        stage_write(0)
        if nchunks > 1:
            stage_load(1)
    else:
        E(f"    s_waitcnt vmcnt({ksteps_c})")
        stage_write(0)
        stage_load(1)
        xload(1)
    E("    s_waitcnt lgkmcnt(0)")
    E("    s_barrier")

    def compute_chunk(c, xreg):
        b = (c & 1) * bufbytes
        units = [(s, j) for s in range(ksteps_c) for j in range(tpw)]
        def rd(u):
            s, j = units[u]
            si, jj = divmod(j, tpsw)
            off = b + s*16*S + si*NT*2 + jj*64
            r = WF + (u % DEPTH)*4
            E(f"    ds_read_b64_tr_b16 v[{r}:{r+1}], v8 offset:{off}")
            E(f"    ds_read_b64_tr_b16 v[{r+2}:{r+3}], v8 offset:{off + 4*S}")
        n = len(units)
        for u in range(min(DEPTH-1, n)):
            rd(u)
        for u in range(n):
            if u + DEPTH - 1 < n:
                rd(u + DEPTH - 1)
                left = DEPTH - 1
            else:
                left = n - 1 - u
            E(f"    s_waitcnt lgkmcnt({2*left})")
            s, j = units[u]
            r = WF + (u % DEPTH)*4
            xr = xreg(s)
            E(f"    v_mfma_f32_32x32x16_bf16 {accr(j)}, v[{r}:{r+3}], v[{xr}:{xr+3}], {accr(j)}")

    if fullx:
        for c in range(nchunks):
            compute_chunk(c, lambda s: XB + (c*ksteps_c + s)*4)
            if c + 1 < nchunks:
                E("    s_waitcnt vmcnt(0)")
                stage_write(c+1)
                if c + 2 < nchunks:
                    stage_load(c+2)
                E("    s_waitcnt lgkmcnt(0)")
                E("    s_barrier")
    else:
        for c in range(nchunks):
            if c + 1 < nchunks:
                E(f"    s_waitcnt vmcnt({nst + ksteps_c})")
            else:
                E("    s_waitcnt vmcnt(0)")
            base = XB + (c & 1) * ksteps_c * 4
            compute_chunk(c, lambda s: base + 4*s)
            if c + 1 < nchunks:
                E(f"    s_waitcnt vmcnt({ksteps_c})")
                stage_write(c+1)
                if c + 2 < nchunks:
                    stage_load(c+2)
                    xload(c+2)
                E("    s_waitcnt lgkmcnt(0)")
                E("    s_barrier")

    E("    s_nop 15")
    E("    s_nop 15")
    ep = g.epi
    E(f"    s_mov_b32 s26, {ep['ld']}")
    E("    v_mul_lo_u32 v10, v5, s26")
    E("    v_lshl_add_u32 v10, v7, 3, v10")
    E(f"    v_mul_u32_u24 v11, {64*tpsw}, v4")
    E("    v_add_u32 v10, v10, v11")
    E("    v_add_u32 v10, s27, v10")
    T = TMP + 16
    for jj in range(tpsw):
        for q in range(4):
            off = jj*64 + q*16
            if ep['kind'] == 'store':
                for r in range(4):
                    E(f"    v_accvgpr_read_b32 v{T+r}, {acc(jj, 4*q+r)}")
                E(f"    v_cvt_pk_bf16_f32 v{T+4}, v{T}, v{T+1}")
                E(f"    v_cvt_pk_bf16_f32 v{T+5}, v{T+2}, v{T+3}")
                E(f"    buffer_store_dwordx2 v[{T+4}:{T+5}], v10, s[40:43], 0 offen offset:{off}")
            elif ep['kind'] == 'res':
                E(f"    buffer_load_dwordx2 v[{T+6}:{T+7}], v10, s[44:47], 0 offen offset:{off}")
                for r in range(4):
                    E(f"    v_accvgpr_read_b32 v{T+r}, {acc(jj, 4*q+r)}")
                E("    s_waitcnt vmcnt(0)")
                E(f"    v_lshlrev_b32 v{T+4}, 16, v{T+6}")
                E(f"    v_and_b32 v{T+5}, 0xffff0000, v{T+6}")
                E(f"    v_add_f32 v{T}, v{T}, v{T+4}")
                E(f"    v_add_f32 v{T+1}, v{T+1}, v{T+5}")
                E(f"    v_lshlrev_b32 v{T+4}, 16, v{T+7}")
                E(f"    v_and_b32 v{T+5}, 0xffff0000, v{T+7}")
                E(f"    v_add_f32 v{T+2}, v{T+2}, v{T+4}")
                E(f"    v_add_f32 v{T+3}, v{T+3}, v{T+5}")
                E(f"    v_cvt_pk_bf16_f32 v{T+4}, v{T}, v{T+1}")
                E(f"    v_cvt_pk_bf16_f32 v{T+5}, v{T+2}, v{T+3}")
                E(f"    buffer_store_dwordx2 v[{T+4}:{T+5}], v10, s[40:43], 0 offen offset:{off}")
            elif ep['kind'] == 'swiglu':
                ju = tpsw + jj
                for r in range(4):
                    E(f"    v_accvgpr_read_b32 v{T+r}, {acc(jj, 4*q+r)}")
                    E(f"    v_mul_f32 v{T+4+r}, 0xbfb8aa3b, v{T+r}")
                    E(f"    v_exp_f32 v{T+4+r}, v{T+4+r}")
                    E(f"    v_accvgpr_read_b32 v{T+8}, {acc(ju, 4*q+r)}")
                    E(f"    v_add_f32 v{T+4+r}, 1.0, v{T+4+r}")
                    E(f"    v_rcp_f32 v{T+4+r}, v{T+4+r}")
                    E(f"    v_mul_f32 v{T+r}, v{T+r}, v{T+8}")
                    E(f"    v_mul_f32 v{T+r}, v{T+r}, v{T+4+r}")
                E(f"    v_cvt_pk_bf16_f32 v{T+4}, v{T}, v{T+1}")
                E(f"    v_cvt_pk_bf16_f32 v{T+5}, v{T+2}, v{T+3}")
                E(f"    buffer_store_dwordx2 v[{T+4}:{T+5}], v10, s[40:43], 0 offen offset:{off}")
    E(f"{name}_done:")
    E("    s_endpgm")
    kernel_desc(name, acc_off + nacc, acc_off)
    return nwg, 2 * bufbytes

def layernorm_regs(XB, n):
    E("    v_mov_b32 v9, 0")
    for i in range(n):
        E(f"    v_lshlrev_b32 v10, 16, v{XB+i}")
        E(f"    v_and_b32 v11, 0xffff0000, v{XB+i}")
        E("    v_add_f32 v9, v9, v10")
        E("    v_add_f32 v9, v9, v11")
    E("    v_xor_b32 v12, 32, v1")
    E("    v_lshlrev_b32 v12, 2, v12")
    E("    ds_bpermute_b32 v13, v12, v9")
    E("    s_waitcnt lgkmcnt(0)")
    E("    v_add_f32 v9, v9, v13")
    E(f"    v_mul_f32 v9, {1.0/D!r}, v9")
    E("    v_mov_b32 v14, 0")
    for i in range(n):
        E(f"    v_lshlrev_b32 v10, 16, v{XB+i}")
        E(f"    v_and_b32 v11, 0xffff0000, v{XB+i}")
        E("    v_sub_f32 v10, v10, v9")
        E("    v_sub_f32 v11, v11, v9")
        E("    v_fmac_f32 v14, v10, v10")
        E("    v_fmac_f32 v14, v11, v11")
    E("    ds_bpermute_b32 v13, v12, v14")
    E("    s_waitcnt lgkmcnt(0)")
    E("    v_add_f32 v14, v14, v13")
    E(f"    v_mov_b32 v15, {1e-5!r}")
    E(f"    v_fmac_f32 v15, {1.0/D!r}, v14")
    E("    v_rsq_f32 v15, v15")
    E("    s_nop 0")
    for i in range(n):
        E(f"    v_lshlrev_b32 v10, 16, v{XB+i}")
        E(f"    v_and_b32 v11, 0xffff0000, v{XB+i}")
        E("    v_sub_f32 v10, v10, v9")
        E("    v_sub_f32 v11, v11, v9")
        E("    v_mul_f32 v10, v10, v15")
        E("    v_mul_f32 v11, v11, v15")
        E(f"    v_cvt_pk_bf16_f32 v{XB+i}, v10, v11")

def gen_attn(name):
    nwg = S_ROWS * 16 // 256
    kernel_begin(name)
    E(f"    s_cmp_ge_u32 s2, {nwg}")
    E(f"    s_cbranch_scc1 {name}_done")
    E("    s_load_dwordx2 s[20:21], s[0:1], 72")
    E("    s_waitcnt lgkmcnt(0)")
    srd_ws(28, 20, 21, WS_QKV, S_ROWS*NQKV*2)
    srd_ws(32, 20, 21, WS_O, S_ROWS*D*2)
    E("    s_lshl_b32 s3, s2, 8")
    E("    v_add_u32 v1, s3, v0")
    E("    v_and_b32 v2, 15, v1")
    E("    v_lshrrev_b32 v3, 4, v1")
    E("    v_mul_u32_u24 v4, 56, v2")
    E(f"    s_mov_b32 s26, {NQKV*2}")
    E("    v_mul_lo_u32 v5, v3, s26")
    E("    v_add_u32 v5, v5, v4")
    for i in range(7):
        E(f"    buffer_load_dwordx2 v[{80+2*i}:{81+2*i}], v5, s[28:31], 0 offen offset:{8*i}")
    E("    s_waitcnt vmcnt(0)")
    for i in range(14):
        E(f"    v_lshlrev_b32 v{16+2*i}, 16, v{80+i}")
        E(f"    v_and_b32 v{17+2*i}, 0xffff0000, v{80+i}")
    for w in range(8):
        E(f"    v_subrev_u32 v6, {2*w}, v3")
        E(f"    v_max_i32 v6, 0, v6")
        E("    v_mul_lo_u32 v7, v6, s26")
        E("    v_add_u32 v7, v7, v4")
        for i in range(7):
            E(f"    buffer_load_dwordx2 v[{80+2*i}:{81+2*i}], v7, s[28:31], 0 offen offset:{896+8*i}")
        E("    s_waitcnt vmcnt(0)")
        E(f"    v_mov_b32 v{48+w}, 0")
        for i in range(14):
            E(f"    v_lshlrev_b32 v8, 16, v{80+i}")
            E(f"    v_and_b32 v9, 0xffff0000, v{80+i}")
            E(f"    v_fmac_f32 v{48+w}, v8, v{16+2*i}")
            E(f"    v_fmac_f32 v{48+w}, v9, v{17+2*i}")
        E(f"    v_mul_f32 v{48+w}, {28**-0.5!r}, v{48+w}")
        E(f"    v_cmp_gt_u32 vcc, {2*w}, v3")
        E("    v_mov_b32 v8, 0xce6e6b28")
        E("    s_nop 1")
        E(f"    v_cndmask_b32 v{48+w}, v{48+w}, v8, vcc")
    E("    v_max_f32 v10, v48, v49")
    for w in range(2, 8):
        E(f"    v_max_f32 v10, v10, v{48+w}")
    E("    v_mov_b32 v11, 0")
    for w in range(8):
        E(f"    v_sub_f32 v{48+w}, v{48+w}, v10")
        E(f"    v_mul_f32 v{48+w}, 0x3fb8aa3b, v{48+w}")
        E(f"    v_exp_f32 v{48+w}, v{48+w}")
        E("    s_nop 0")
        E(f"    v_add_f32 v11, v11, v{48+w}")
    E("    v_rcp_f32 v11, v11")
    E("    s_nop 0")
    for w in range(8):
        E(f"    v_mul_f32 v{48+w}, v{48+w}, v11")
    for i in range(28):
        E(f"    v_mov_b32 v{16+i}, 0")
    for w in range(8):
        E(f"    v_subrev_u32 v6, {2*w}, v3")
        E(f"    v_max_i32 v6, 0, v6")
        E("    v_mul_lo_u32 v7, v6, s26")
        E("    v_add_u32 v7, v7, v4")
        for i in range(7):
            E(f"    buffer_load_dwordx2 v[{80+2*i}:{81+2*i}], v7, s[28:31], 0 offen offset:{1792+8*i}")
        E("    s_waitcnt vmcnt(0)")
        for i in range(14):
            E(f"    v_lshlrev_b32 v8, 16, v{80+i}")
            E(f"    v_and_b32 v9, 0xffff0000, v{80+i}")
            E(f"    v_fmac_f32 v{16+2*i}, v8, v{48+w}")
            E(f"    v_fmac_f32 v{17+2*i}, v9, v{48+w}")
    E(f"    v_mul_u32_u24 v5, {D*2}, v3")
    E("    v_add_u32 v5, v5, v4")
    for i in range(14):
        E(f"    v_cvt_pk_bf16_f32 v{80+i}, v{16+2*i}, v{17+2*i}")
    for i in range(7):
        E(f"    buffer_store_dwordx2 v[{80+2*i}:{81+2*i}], v5, s[32:35], 0 offen offset:{8*i}")
    E(f"{name}_done:")
    E("    s_endpgm")
    kernel_desc(name, 96, 96)
    return nwg

def main():
    global out
    body_start = len(out)
    E('.amdgcn_target "amdgcn-amd-amdhsa--gfx950"')
    E(".text")
    launches = []
    g1 = Gemm("k1_qkv_kernel", 448, 64, [('wqkv', NQKV*2)], 4, 1, 3, True,
              dict(kind='store', dst='qkv', ld=NQKV*2), 'x', D*2, 16, 14, 192)
    n, lds = gen_gemm(g1); launches.append((g1.name, n, 256, lds))
    n = gen_attn("k_attn_kernel"); launches.append(("k_attn_kernel", n, 256, 0))
    g2 = Gemm("k2_wo_kernel", 448, 64, [('wo', D*2)], 2, 2, 2, False,
              dict(kind='res', dst='h', res='x', ld=D*2), 'o', D*2, 32, 7, 192)
    n, lds = gen_gemm(g2); launches.append((g2.name, n, 256, lds))
    g3 = Gemm("k3_gu_kernel", 448, 32, [('wg', F*2), ('wu', F*2)], 4, 1, 4, True,
              dict(kind='swiglu', dst='act', ld=F*2), 'h', D*2, 16, 14, 576)
    n, lds = gen_gemm(g3); launches.append((g3.name, n, 256, lds))
    g4 = Gemm("k4_down_kernel", 1792, 64, [('wd', D*2)], 2, 2, 2, False,
              dict(kind='res', dst='out', res='h', ld=D*2), 'act', F*2, 32, 7, 192)
    n, lds = gen_gemm(g4); launches.append((g4.name, n, 256, lds))
    hdr = open('sequential_preLN__sliding_local_dilated__swiglu_ffn__prompt.s.ref').read().split('\n')
    head = [l for l in hdr if l.startswith(';') and '@launch' not in l and 'Override launch' not in l and 'grid=ceil' not in l]
    for (nm, n, b, lds) in launches:
        head.append(f"; @launch kernel={nm} grid=({n},1,1) block=({b},1,1) lds={lds}")
    txt = '\n'.join(head + out) + '\n'
    dst = sys.argv[1] if len(sys.argv) > 1 else 'sequential_preLN__sliding_local_dilated__swiglu_ffn__prompt.s'
    open(dst, 'w').write(txt)
    print("wrote", dst, len(txt), "bytes")

main()
```

```python
import sys

S_ROWS, D, F = 2048, 448, 1792
NQKV = 3 * D
WS_QKV = 0x0
WS_O = 0x600000
WS_H = 0x800000
WS_ACT = 0xA00000

out = []
def E(s=""):
    out.append(s)
import os
STAMP = os.environ.get("STAMP", "")
class St:
    n = 0
    on = False
def stamp():
    if not St.on: return
    E("    s_waitcnt lgkmcnt(0)")
    E(f"    s_memtime s[{60+2*St.n}:{61+2*St.n}]")
    E("    s_waitcnt lgkmcnt(0)")
    St.n += 1
def stamp_dump():
    if not St.on: return
    E("    s_load_dwordx2 s[96:97], s[0:1], 64")
    E("    s_waitcnt lgkmcnt(0)")
    E("    s_mov_b32 s98, 256")
    E("    s_mov_b32 s99, 0x00020000")
    E("    s_and_b32 s97, s97, 0xffff")
    E("    s_cmp_lg_u32 s2, 0")
    E("    s_cbranch_scc1 9f")
    E("    v_mov_b32 v1, 0")
    for i in range(St.n-1, -1, -1):
        E(f"    v_mov_b32 v2, s{60+2*i}")
        E(f"    buffer_store_dword v2, v1, s[96:99], 0 offen offset:{4*i}")
    E("9:")

def srd(dst, lo, hi, size):
    E(f"    s_mov_b32 s{dst}, s{lo}")
    E(f"    s_and_b32 s{dst+1}, s{hi}, 0xffff")
    E(f"    s_mov_b32 s{dst+2}, {size}")
    E(f"    s_mov_b32 s{dst+3}, 0x00020000")

def srd_ws(dst, wslo, wshi, off, size):
    E(f"    s_add_u32 s{dst}, s{wslo}, {off}")
    E(f"    s_addc_u32 s{dst+1}, s{wshi}, 0")
    E(f"    s_and_b32 s{dst+1}, s{dst+1}, 0xffff")
    E(f"    s_mov_b32 s{dst+2}, {size}")
    E(f"    s_mov_b32 s{dst+3}, 0x00020000")

def kernel_begin(name):
    E(f".globl {name}")
    E(".p2align 8")
    E(f".type {name},@function")
    E(f"{name}:")

def kernel_desc(name, nvgpr, accum_offset, nsgpr=102):
    E('.section .rodata,"a"')
    E(".p2align 6")
    E(f".amdhsa_kernel {name}")
    E(f"  .amdhsa_next_free_vgpr {nvgpr}")
    E(f"  .amdhsa_next_free_sgpr {nsgpr}")
    E(f"  .amdhsa_accum_offset {accum_offset}")
    E("  .amdhsa_group_segment_fixed_size 0")
    E("  .amdhsa_kernarg_size 80")
    E("  .amdhsa_user_sgpr_count 2")
    E("  .amdhsa_user_sgpr_kernarg_segment_ptr 1")
    E("  .amdhsa_system_sgpr_workgroup_id_x 1")
    E(".end_amdhsa_kernel")
    E(".text")

def div_const(dst, src, d, maxv, tmp_s):
    if d & (d - 1) == 0:
        E(f"    v_lshrrev_b32 v{dst}, {d.bit_length()-1}, v{src}")
        return
    sh = 20
    M = (1 << sh) // d + 1
    for x in range(maxv):
        assert (x * M) >> sh == x // d, (x, d)
    assert maxv * M < (1 << 32)
    E(f"    s_mov_b32 s{tmp_s}, {M}")
    E(f"    v_mul_lo_u32 v{dst}, v{src}, s{tmp_s}")
    E(f"    v_lshrrev_b32 v{dst}, {sh}, v{dst}")

class Gemm:
    def __init__(self, name, K, KC, wsrcs, waves_m, waves_n, tiles_per_src, ln, epi,
                 xsrc, x_ld, n_mb, n_nb, S, PD, nmajor=False, ksplit=False):
        self.__dict__.update(locals())

class VM:
    def __init__(self):
        self.q = []
    def issue(self, tag, n):
        self.q.append([tag, n])
    def wait(self, tag):
        idx = max(i for i, (t, n) in enumerate(self.q) if t == tag)
        after = sum(n for (t, n) in self.q[idx+1:])
        E(f"    s_waitcnt vmcnt({min(after, 63)})")
        self.q = self.q[idx+1:]

def gen_gemm(g):
    name = g.name
    K, KC, R = g.K, g.KC, g.PD
    fused = g.epi['kind'] == 'attn'
    ksplit = g.ksplit
    nsrc = len(g.wsrcs)
    tps = g.tiles_per_src
    NT = tps * 32
    RB = NT * 2
    assert RB in (128, 256)
    MT = 32 * g.waves_m
    nwg = g.n_mb * g.n_nb
    nchunks = K // KC
    R = min(R, nchunks)
    ksteps_c = KC // 16
    fullx = (K == 448)
    wsrcb = KC * RB
    lpt = wsrcb // 4096
    assert wsrcb % 4096 == 0
    tpsw = tps if ksplit else tps // g.waves_n
    tpw = nsrc * tpsw
    wbuf = nsrc * wsrcb
    xbuf = 0 if fullx else MT * 128
    nxl = (MT * 896 // 4096) if fullx else (xbuf // 4096)
    assert (MT * 896) % 4096 == 0
    bufbytes = wbuf + xbuf
    XB = 16
    nx = 112 if fullx else 16
    WF = XB + nx
    DEPTH = 6
    TMP = WF + DEPTH * 4
    VEND2 = TMP + 40
    acc_off = (VEND2 + 3) // 4 * 4
    nacc = (g.waves_m * tpw if ksplit else tpw) * 16
    vm = VM()
    def acc(j, r):
        return f"a{j*16+r}"
    def accr(j):
        return f"a[{j*16}:{j*16+15}]"
    WA = TMP
    XA = TMP + 4
    WG = TMP + 8
    XG = TMP + 9
    T = TMP + 12 if fullx else 100

    kernel_begin(name)
    St.on = (STAMP == name); St.n = 0
    E(f"    s_cmp_ge_u32 s2, {nwg}")
    E(f"    s_cbranch_scc1 {name}_done")
    stamp()
    E("    s_load_dwordx4 s[4:7], s[0:1], 0")
    E("    s_load_dwordx4 s[8:11], s[0:1], 16")
    E("    s_load_dwordx4 s[12:15], s[0:1], 32")
    E("    s_load_dwordx4 s[16:19], s[0:1], 48")
    E("    s_load_dwordx2 s[20:21], s[0:1], 72")
    E("    s_and_b32 s22, s2, 7")
    E(f"    s_mul_i32 s22, s22, {nwg//8}")
    E("    s_lshr_b32 s23, s2, 3")
    E("    s_add_u32 s3, s22, s23")
    if g.nmajor:
        E(f"    s_mov_b32 s22, {(1<<32)//g.n_mb + 1}")
        E("    s_mul_hi_u32 s24, s3, s22")
        E(f"    s_mul_i32 s23, s24, {g.n_mb}")
        E("    s_sub_u32 s23, s3, s23")
    else:
        E(f"    s_mov_b32 s22, {(1<<32)//g.n_nb + 1}")
        E("    s_mul_hi_u32 s23, s3, s22")
        E(f"    s_mul_i32 s24, s23, {g.n_nb}")
        E("    s_sub_u32 s24, s3, s24")
    E("    v_and_b32 v1, 63, v0")
    E("    v_lshrrev_b32 v2, 6, v0")
    E("    s_nop 0")
    E("    v_readfirstlane_b32 s50, v2")
    E("    s_waitcnt lgkmcnt(0)")
    E("    s_lshl_b32 s51, s50, 10")
    stamp()
    ptr = {'x': (4, 5, S_ROWS*D*2, None), 'wqkv': (6, 7, D*NQKV*2, None), 'wo': (8, 9, D*D*2, None),
           'wg': (12, 13, D*F*2, None), 'wu': (14, 15, D*F*2, None), 'wd': (16, 17, F*D*2, None),
           'out': (18, 19, S_ROWS*D*2, None),
           'o': (20, 21, S_ROWS*D*2, WS_O),
           'h': (20, 21, S_ROWS*D*2, WS_H), 'act': (20, 21, S_ROWS*F*2, WS_ACT)}
    def mk(dst, key):
        lo, hi, size, off = ptr[key]
        if off is None:
            srd(dst, lo, hi, size)
        else:
            srd_ws(dst, lo, hi, off, size)
    mk(28, g.xsrc)
    for i, w in enumerate(g.wsrcs[:2]):
        mk(32 + 4*i, w[0])
    mk(40, g.epi['dst'])
    if 'res' in g.epi:
        mk(44, g.epi['res'])
    def wsrd(si):
        return "s[32:35]" if fused else f"s[{32+4*si}:{35+4*si}]"
    def dma(voff, srd_, soff, ldsimm):
        E(f"    s_add_u32 m0, s51, {ldsimm}")
        E("    s_nop 0")
        E(f"    buffer_load_dwordx4 {voff}, {srd_}, {soff} offen lds")
    if ksplit:
        E("    v_mov_b32 v3, 0")
        E("    v_mov_b32 v4, 0")
    else:
        E(f"    v_lshrrev_b32 v3, {g.waves_n.bit_length()-1}, v2")
        E(f"    v_and_b32 v4, {g.waves_n-1}, v2")
    if fused:
        E("    s_lshl_b32 s25, s23, 6")
        E("    s_sub_i32 s25, s25, 32")
    else:
        E(f"    s_mul_i32 s25, s23, {MT}")
    E("    v_and_b32 v5, 31, v1")
    E("    v_lshl_add_u32 v5, v3, 5, v5")
    E("    v_lshrrev_b32 v7, 5, v1")
    E(f"    s_mul_i32 s26, s25, {g.x_ld}")
    ldw = g.wsrcs[0][1]
    E(f"    s_mul_i32 s27, s24, {112 if fused else RB}")
    if fullx:
        for i in range(nxl):
            E(f"    v_add_u32 v12, {256*i}, v0")
            div_const(13, 12, 56, 256*nxl, 48)
            E("    v_mul_u32_u24 v14, 56, v13")
            E("    v_sub_u32 v14, v12, v14")
            E("    v_bfe_u32 v15, v13, 1, 3")
            E("    v_xor_b32 v14, v14, v15")
            E("    v_mul_u32_u24 v13, 896, v13")
            E("    v_lshl_add_u32 v13, v14, 4, v13")
            E("    v_add_u32 v13, s26, v13")
            dma("v13", "s[28:31]", "0", 4096*i)
        vm.issue('x', nxl)
    else:
        E("    v_lshrrev_b32 v12, 3, v1")
        E("    v_lshl_add_u32 v12, v2, 3, v12")
        E(f"    s_mov_b32 s48, {g.x_ld}")
        E("    v_mul_lo_u32 v12, v12, s48")
        E("    v_and_b32 v13, 1, v2")
        E("    v_lshlrev_b32 v13, 2, v13")
        E("    v_lshrrev_b32 v14, 4, v1")
        E("    v_add_u32 v13, v13, v14")
        E("    v_and_b32 v14, 7, v1")
        E("    v_xor_b32 v13, v13, v14")
        E(f"    v_lshl_add_u32 v{XG}, v13, 4, v12")
        E(f"    v_add_u32 v{XG}, s26, v{XG}")
    stamp()
    if RB == 256:
        E("    v_lshrrev_b32 v12, 4, v1")
        E("    v_lshl_add_u32 v13, v2, 2, v12")
        E(f"    s_mov_b32 s48, {ldw}")
        E("    v_mul_lo_u32 v13, v13, s48")
        E("    v_bfe_u32 v14, v1, 2, 2")
        E("    v_xor_b32 v14, v14, v12")
        E("    v_lshl_add_u32 v13, v14, 6, v13")
        E("    v_and_b32 v14, 3, v1")
        E("    v_lshl_add_u32 v13, v14, 4, v13")
        rows_per_i = 16
    else:
        E("    v_lshrrev_b32 v12, 3, v1")
        E("    v_lshl_add_u32 v13, v2, 3, v12")
        E(f"    s_mov_b32 s48, {ldw}")
        E("    v_mul_lo_u32 v13, v13, s48")
        E("    v_bfe_u32 v14, v1, 2, 1")
        E("    v_bfe_u32 v15, v1, 4, 1")
        E("    v_xor_b32 v14, v14, v15")
        E("    v_lshl_add_u32 v13, v14, 6, v13")
        E("    v_and_b32 v14, 3, v1")
        E("    v_lshl_add_u32 v13, v14, 4, v13")
        rows_per_i = 32
    E(f"    v_add_u32 v{WG}, s27, v13")
    def stage(c):
        b = (c % R) * bufbytes
        for si in range(nsrc):
            for i in range(lpt):
                E(f"    s_mov_b32 s48, {(c*KC + rows_per_i*i)*ldw + (si*896 if fused else 0)}")
                dma(f"v{WG}", wsrd(si), "s48", (0 if fullx else 0) + b + si*wsrcb + 4096*i + XOFF)
        n = nsrc * lpt
        if not fullx:
            for i in range(nxl):
                E(f"    s_mov_b32 s48, {c*KC*2 + 32*i*g.x_ld}")
                dma(f"v{XG}", "s[28:31]", "s48", b + wbuf + 4096*i + XOFF)
            n += nxl
        vm.issue(('w', c), n)
    XOFF = MT * 896 if fullx else 0
    for c in range(R - 1):
        stage(c)
    E("    v_bfe_u32 v8, v1, 2, 2")
    E("    v_lshl_add_u32 v9, v7, 3, v8")
    if ksplit:
        E("    v_lshl_add_u32 v9, v2, 4, v9")
    E(f"    v_lshlrev_b32 v9, {RB.bit_length()-1}, v9")
    E("    v_bfe_u32 v10, v1, 4, 1")
    E("    v_lshl_add_u32 v9, v10, 5, v9")
    E("    v_and_b32 v10, 3, v1")
    E("    v_lshl_add_u32 v9, v10, 3, v9")
    E(f"    v_add_u32 v9, {XOFF}, v9")
    if RB == 128:
        E("    v_bfe_u32 v8, v1, 3, 1")
    nseg = RB // 64
    for j in range(tpsw):
        E(f"    v_mul_u32_u24 v10, {tpsw}, v4")
        E(f"    v_add_u32 v10, {j}, v10")
        E("    v_xor_b32 v10, v10, v8")
        E(f"    v_lshl_add_u32 v{WA+j}, v10, 6, v9")
    if fullx:
        E("    v_mul_u32_u24 v9, 896, v5")
        E("    v_bfe_u32 v8, v5, 1, 3")
        for t in range(4):
            E(f"    v_add_u32 v10, {2*t}, v7")
            E("    v_xor_b32 v10, v10, v8")
            E(f"    v_lshl_add_u32 v{XA+t}, v10, 4, v9")
    else:
        E("    v_lshlrev_b32 v9, 7, v5")
        E("    v_bfe_u32 v8, v5, 1, 3")
        E("    v_lshl_add_u32 v10, v2, 1, v7")
        E("    v_xor_b32 v10, v10, v8")
        E(f"    v_lshl_add_u32 v{XA}, v10, 4, v9")
        E(f"    v_add_u32 v{XA}, {wbuf}, v{XA}")
    stamp()
    for r in range(nacc):
        E(f"    v_accvgpr_write_b32 a{r}, 0")
    if fullx:
        vm.wait('x')
        stamp()
        E("    s_barrier")
        if fused:
            E("    s_cmp_eq_u32 s50, 3")
            E(f"    s_cbranch_scc1 {name}_skipx")
        for s in range(28):
            E(f"    ds_read_b128 v[{XB+4*s}:{XB+4*s+3}], v{XA + (s&3)} offset:{128*(s>>2)}")
        E("    s_waitcnt lgkmcnt(0)")
        stamp()
        if g.ln:
            layernorm_regs(XB, 112)
            stamp()
        if fused:
            E(f"{name}_skipx:")
    vm.wait(('w', 0))
    E("    s_barrier")
    stamp()

    def compute_chunk(c, tiles, mid=None):
        b = (c % R) * bufbytes
        if ksplit:
            for mt in range(g.waves_m):
                E(f"    ds_read_b128 v[{XB+4*mt}:{XB+4*mt+3}], v{XA} offset:{b + 4096*mt}")
            units = [(-1, j) for j in tiles]
        else:
            units = [(s, j) for s in range(ksteps_c) for j in tiles]
        def rd(u):
            s, j = units[u]
            si, jj = divmod(j, tpsw)
            off = b + max(s, 0)*16*RB + si*wsrcb
            r = WF + (u % DEPTH)*4
            E(f"    ds_read_b64_tr_b16 v[{r}:{r+1}], v{WA+jj} offset:{off}")
            E(f"    ds_read_b64_tr_b16 v[{r+2}:{r+3}], v{WA+jj} offset:{off + 4*RB}")
        n = len(units)
        for u in range(min(DEPTH-1, n)):
            rd(u)
        if mid is not None:
            mid()
        for u in range(n):
            if u + DEPTH - 1 < n:
                rd(u + DEPTH - 1)
                left = DEPTH - 1
            else:
                left = n - 1 - u
            E(f"    s_waitcnt lgkmcnt({2*left})")
            s, j = units[u]
            r = WF + (u % DEPTH)*4
            if ksplit:
                for mt in range(g.waves_m):
                    a = mt*tpw + j
                    E(f"    v_mfma_f32_32x32x16_bf16 {accr(a)}, v[{r}:{r+3}], v[{XB+4*mt}:{XB+4*mt+3}], {accr(a)}")
            else:
                xr = XB + (c*ksteps_c + s)*4
                E(f"    v_mfma_f32_32x32x16_bf16 {accr(j)}, v[{r}:{r+3}], v[{xr}:{xr+3}], {accr(j)}")

    import copy
    for c in range(nchunks):
        def mid():
            if c + R - 1 < nchunks:
                stage(c + R - 1)
        if fused:
            q0 = copy.deepcopy(vm.q)
            E("    s_cmp_eq_u32 s50, 3")
            E(f"    s_cbranch_scc1 {name}_c{c}_idle")
            E("    s_cmp_eq_u32 s50, 0")
            E(f"    s_cbranch_scc1 {name}_c{c}_halo")
            compute_chunk(c, list(range(6)), mid)
            E(f"    s_branch {name}_c{c}_end")
            E(f"{name}_c{c}_halo:")
            vm.q = copy.deepcopy(q0)
            compute_chunk(c, list(range(2, 6)), mid)
            E(f"    s_branch {name}_c{c}_end")
            E(f"{name}_c{c}_idle:")
            vm.q = copy.deepcopy(q0)
            mid()
            E(f"{name}_c{c}_end:")
        else:
            compute_chunk(c, list(range(tpw)), mid)
        if c + 1 < nchunks:
            vm.wait(('w', c+1))
            E("    s_barrier")

    stamp()
    E("    s_nop 15")
    E("    s_barrier")
    ep = g.epi
    lds_epi = 0
    if fused:
        attn_epilogue(name, acc, T)
        lds_epi = 96 * QS
    elif ksplit:
        RS = 256 + 16
        WR = 64 * RS
        E(f"    v_mul_u32_u24 v10, {WR}, v2")
        E("    v_and_b32 v11, 31, v1")
        E(f"    v_mul_u32_u24 v11, {RS}, v11")
        E("    v_add_u32 v10, v10, v11")
        E("    v_lshl_add_u32 v10, v7, 4, v10")
        for mt in range(g.waves_m):
            for jj in range(tpw):
                for q in range(4):
                    for r in range(4):
                        E(f"    v_accvgpr_read_b32 v{T+r}, {acc(mt*tpw + jj, 4*q+r)}")
                    E(f"    ds_write_b128 v10, v[{T}:{T+3}] offset:{mt*32*RS + jj*128 + q*32}")
        E("    v_lshrrev_b32 v11, 3, v1")
        E("    v_lshl_add_u32 v11, v2, 4, v11")
        E("    v_and_b32 v12, 7, v1")
        E(f"    v_mul_u32_u24 v13, {RS}, v11")
        E("    v_lshl_add_u32 v13, v12, 5, v13")
        E("    v_add_u32 v14, s25, v11")
        E(f"    s_mov_b32 s26, {ep['ld']}")
        E("    v_mul_lo_u32 v14, v14, s26")
        E("    v_lshl_add_u32 v14, v12, 4, v14")
        E("    v_add_u32 v14, s27, v14")
        for i in range(2):
            E(f"    s_mov_b32 s48, {i*8*ep['ld']}")
            E(f"    buffer_load_dwordx4 v[{XB+64+4*i}:{XB+67+4*i}], v14, s[44:47], s48 offen")
        E("    s_waitcnt lgkmcnt(0)")
        E("    s_barrier")
        for i in range(2):
            for w in range(4):
                rr = XB + (i*4 + w)*8
                E(f"    ds_read_b128 v[{rr}:{rr+3}], v13 offset:{w*WR + i*8*RS}")
                E(f"    ds_read_b128 v[{rr+4}:{rr+7}], v13 offset:{w*WR + i*8*RS + 16}")
        for i in range(2):
            E(f"    s_waitcnt vmcnt({1-i}) lgkmcnt({8*(1-i)})")
            for e in range(8):
                a0 = XB + i*32 + e
                E(f"    v_add_f32 v{a0}, v{a0}, v{a0+8}")
                E(f"    v_add_f32 v{a0+16}, v{a0+16}, v{a0+24}")
                E(f"    v_add_f32 v{a0}, v{a0}, v{a0+16}")
            for e in range(4):
                rr = XB + 64 + 4*i + e
                a0 = XB + i*32 + 2*e
                E(f"    v_lshlrev_b32 v{T}, 16, v{rr}")
                E(f"    v_and_b32 v{T+1}, 0xffff0000, v{rr}")
                E(f"    v_add_f32 v{T}, v{T}, v{a0}")
                E(f"    v_add_f32 v{T+1}, v{T+1}, v{a0+1}")
                E(f"    v_cvt_pk_bf16_f32 v{rr}, v{T}, v{T+1}")
            E(f"    s_mov_b32 s48, {i*8*ep['ld']}")
            E(f"    buffer_store_dwordx4 v[{XB+64+4*i}:{XB+67+4*i}], v14, s[40:43], s48 offen")
        lds_epi = 4 * WR
    else:
        f32 = ep['kind'] == 'res'
        rowb = tpsw * (128 if f32 else 64)
        RS = rowb + 16
        lds_epi = 4 * 32 * RS
        E(f"    v_mul_u32_u24 v10, {32*RS}, v2")
        E("    v_and_b32 v11, 31, v1")
        E(f"    v_mul_u32_u24 v11, {RS}, v11")
        E("    v_add_u32 v10, v10, v11")
        E(f"    v_lshl_add_u32 v10, v7, {4 if f32 else 3}, v10")
        for jj in range(tpsw):
            for q in range(4):
                if ep['kind'] == 'store' or f32:
                    for r in range(4):
                        E(f"    v_accvgpr_read_b32 v{T+r}, {acc(jj, 4*q+r)}")
                    if f32:
                        E(f"    ds_write_b128 v10, v[{T}:{T+3}] offset:{jj*128 + q*32}")
                    else:
                        E(f"    v_cvt_pk_bf16_f32 v{T+4}, v{T}, v{T+1}")
                        E(f"    v_cvt_pk_bf16_f32 v{T+5}, v{T+2}, v{T+3}")
                        E(f"    ds_write_b64 v10, v[{T+4}:{T+5}] offset:{jj*64 + q*16}")
                elif ep['kind'] == 'swiglu':
                    ju = tpsw + jj
                    for r in range(4):
                        E(f"    v_accvgpr_read_b32 v{T+r}, {acc(jj, 4*q+r)}")
                        E(f"    v_accvgpr_read_b32 v{T+8+r}, {acc(ju, 4*q+r)}")
                    for r in range(4):
                        E(f"    v_mul_f32 v{T+4+r}, 0xbfb8aa3b, v{T+r}")
                    for r in range(4):
                        E(f"    v_exp_f32 v{T+4+r}, v{T+4+r}")
                    for r in range(4):
                        E(f"    v_mul_f32 v{T+r}, v{T+r}, v{T+8+r}")
                    for r in range(4):
                        E(f"    v_add_f32 v{T+4+r}, 1.0, v{T+4+r}")
                    for r in range(4):
                        E(f"    v_rcp_f32 v{T+4+r}, v{T+4+r}")
                    E("    s_nop 0")
                    for r in range(4):
                        E(f"    v_mul_f32 v{T+r}, v{T+r}, v{T+4+r}")
                    E(f"    v_cvt_pk_bf16_f32 v{T+4}, v{T}, v{T+1}")
                    E(f"    v_cvt_pk_bf16_f32 v{T+5}, v{T+2}, v{T+3}")
                    E(f"    ds_write_b64 v10, v[{T+4}:{T+5}] offset:{jj*64 + q*16}")
        cpr = tpsw * 4
        rpi = 64 // cpr
        nit = 32 // rpi
        E(f"    v_lshrrev_b32 v11, {cpr.bit_length()-1}, v1")
        E(f"    v_and_b32 v12, {cpr-1}, v1")
        E(f"    v_mul_u32_u24 v13, {32*RS}, v2")
        E(f"    v_mul_u32_u24 v14, {RS}, v11")
        E("    v_add_u32 v13, v13, v14")
        E(f"    v_lshl_add_u32 v13, v12, {5 if f32 else 4}, v13")
        E("    v_lshl_add_u32 v14, v3, 5, v11")
        E("    v_add_u32 v14, s25, v14")
        E(f"    s_mov_b32 s26, {ep['ld']}")
        E("    v_mul_lo_u32 v14, v14, s26")
        E("    v_lshl_add_u32 v14, v12, 4, v14")
        E(f"    v_mul_u32_u24 v15, {64*tpsw}, v4")
        E("    v_add_u32 v14, v14, v15")
        E("    v_add_u32 v14, s27, v14")
        E("    s_waitcnt lgkmcnt(0)")
        if f32:
            for i in range(nit):
                E(f"    s_mov_b32 s48, {i*rpi*ep['ld']}")
                E(f"    buffer_load_dwordx4 v[{XB+64+4*i}:{XB+67+4*i}], v14, s[44:47], s48 offen")
            for i in range(nit):
                E(f"    ds_read_b128 v[{XB+8*i}:{XB+8*i+3}], v13 offset:{i*rpi*RS}")
                E(f"    ds_read_b128 v[{XB+8*i+4}:{XB+8*i+7}], v13 offset:{i*rpi*RS+16}")
            for i in range(nit):
                E(f"    s_waitcnt vmcnt({nit-1-i}) lgkmcnt({2*(nit-1-i)})")
                for e in range(4):
                    rr = XB + 64 + 4*i + e
                    a0 = XB + 8*i + 2*e
                    E(f"    v_lshlrev_b32 v{T}, 16, v{rr}")
                    E(f"    v_and_b32 v{T+1}, 0xffff0000, v{rr}")
                    E(f"    v_add_f32 v{T}, v{T}, v{a0}")
                    E(f"    v_add_f32 v{T+1}, v{T+1}, v{a0+1}")
                    E(f"    v_cvt_pk_bf16_f32 v{rr}, v{T}, v{T+1}")
                E(f"    s_mov_b32 s48, {i*rpi*ep['ld']}")
                E(f"    buffer_store_dwordx4 v[{XB+64+4*i}:{XB+67+4*i}], v14, s[40:43], s48 offen")
        else:
            for i in range(nit):
                E(f"    ds_read_b128 v[{XB+4*i}:{XB+4*i+3}], v13 offset:{i*rpi*RS}")
            for i in range(nit):
                E(f"    s_waitcnt lgkmcnt({nit-1-i})")
                E(f"    s_mov_b32 s48, {i*rpi*ep['ld']}")
                E(f"    buffer_store_dwordx4 v[{XB+4*i}:{XB+4*i+3}], v14, s[40:43], s48 offen")
    if St.on:
        E("    s_waitcnt vmcnt(0)")
    stamp()
    stamp_dump()
    St.on = False
    E(f"{name}_done:")
    E("    s_endpgm")
    nv = max(acc_off, 176 if fused else 0, XB + 80)
    acc_off2 = (nv + 3)//4*4
    assert acc_off2 == acc_off or True
    kernel_desc(name, ACC[0] + nacc, ACC[0])
    lds = max(XOFF + R * bufbytes, lds_epi)
    assert lds <= 163840, lds
    return nwg, lds

ACC = [192]
QS = 400

def attn_epilogue(name, acc, T):
    E("    s_cmp_eq_u32 s50, 3")
    E(f"    s_cbranch_scc1 {name}_wr_end")
    E(f"    v_mul_u32_u24 v10, {QS}, v5")
    E("    v_lshl_add_u32 v10, v7, 3, v10")
    for j in range(6):
        for q in range(4):
            for r in range(4):
                E(f"    v_accvgpr_read_b32 v{T+r}, {acc(j, 4*q+r)}")
            E(f"    v_cvt_pk_bf16_f32 v{T+4}, v{T}, v{T+1}")
            E(f"    v_cvt_pk_bf16_f32 v{T+5}, v{T+2}, v{T+3}")
            E(f"    ds_write_b64 v10, v[{T+4}:{T+5}] offset:{j*64 + q*16}")
    E(f"{name}_wr_end:")
    E("    s_waitcnt lgkmcnt(0)")
    E("    s_barrier")
    E("    v_lshrrev_b32 v3, 2, v0")
    E("    v_bfe_u32 v4, v0, 1, 1")
    E("    v_mul_u32_u24 v4, 56, v4")
    E("    v_and_b32 v11, 1, v0")
    E("    v_add_u32 v5, 32, v3")
    E(f"    v_mul_u32_u24 v5, {QS}, v5")
    E("    v_add_u32 v5, v5, v4")
    for i in range(7):
        E(f"    ds_read_b64 v[{16+2*i}:{17+2*i}], v5 offset:{8*i}")
    E(f"    v_mul_u32_u24 v6, {8*QS}, v11")
    E("    v_sub_u32 v6, v5, v6")
    E(f"    v_subrev_u32 v6, {6*QS}, v6")
    KB = 64
    for w in range(4):
        for i in range(7):
            r = KB + w*14 + 2*i
            E(f"    ds_read_b64 v[{r}:{r+1}], v6 offset:{(6-2*w)*QS + 128 + 8*i}")
        if w == 1:
            E("    s_waitcnt lgkmcnt(0)")
    E("    s_lshl_b32 s26, s23, 6")
    E("    v_add_u32 v3, s26, v3")
    E("    v_lshlrev_b32 v12, 3, v11")
    E("    v_sub_u32 v12, v3, v12")
    E("    s_waitcnt lgkmcnt(0)")
    for w in range(4):
        E(f"    v_mov_b32 v{48+w}, 0")
    for i in range(14):
        for w in range(4):
            E(f"    v_dot2_f32_bf16 v{48+w}, v{KB + w*14 + i}, v{16+i}, v{48+w}")
    for w in range(4):
        for i in range(7):
            r = KB + w*14 + 2*i
            E(f"    ds_read_b64 v[{r}:{r+1}], v6 offset:{(6-2*w)*QS + 256 + 8*i}")
    E("    v_mov_b32 v8, 0xce6e6b28")
    for w in range(4):
        E(f"    v_mul_f32 v{48+w}, {28**-0.5!r}, v{48+w}")
        E(f"    v_cmp_gt_i32 vcc, {2*w}, v12")
        E("    s_nop 1")
        E(f"    v_cndmask_b32 v{48+w}, v{48+w}, v8, vcc")
    E("    v_max_f32 v56, v48, v49")
    E("    v_max_f32 v57, v50, v51")
    E("    v_max_f32 v56, v56, v57")
    E("    s_nop 1")
    E("    v_max_f32_dpp v56, v56, v56 quad_perm:[1,0,3,2] row_mask:0xf bank_mask:0xf")
    E("    v_mov_b32 v57, 0")
    for w in range(4):
        E(f"    v_sub_f32 v{48+w}, v{48+w}, v56")
        E(f"    v_mul_f32 v{48+w}, 0x3fb8aa3b, v{48+w}")
        E(f"    v_exp_f32 v{48+w}, v{48+w}")
        E("    s_nop 0")
        E(f"    v_add_f32 v57, v57, v{48+w}")
    E("    s_nop 1")
    E("    v_add_f32_dpp v57, v57, v57 quad_perm:[1,0,3,2] row_mask:0xf bank_mask:0xf")
    E("    v_rcp_f32 v57, v57")
    E("    s_nop 0")
    for w in range(4):
        E(f"    v_mul_f32 v{48+w}, v{48+w}, v57")
    E("    s_waitcnt lgkmcnt(0)")
    for w in range(4):
        for i in range(14):
            r = KB + w*14 + i
            E(f"    v_lshlrev_b32 v8, 16, v{r}")
            E(f"    v_and_b32 v9, 0xffff0000, v{r}")
            if w == 0:
                E(f"    v_mul_f32 v{16+2*i}, v8, v{48+w}")
                E(f"    v_mul_f32 v{17+2*i}, v9, v{48+w}")
            else:
                E(f"    v_fmac_f32 v{16+2*i}, v8, v{48+w}")
                E(f"    v_fmac_f32 v{17+2*i}, v9, v{48+w}")
    E("    s_nop 1")
    for i in range(28):
        E(f"    v_add_f32_dpp v{16+i}, v{16+i}, v{16+i} quad_perm:[1,0,3,2] row_mask:0xf bank_mask:0xf")
    for i in range(14):
        E(f"    v_cvt_pk_bf16_f32 v{64+i}, v{16+2*i}, v{17+2*i}")
    E(f"    v_mul_u32_u24 v5, {D*2}, v3")
    E("    v_add_u32 v5, v5, v4")
    E("    v_add_u32 v5, s27, v5")
    E("    v_cmp_eq_u32 vcc, 1, v11")
    E("    s_nop 1")
    for i in range(8):
        E(f"    v_cndmask_b32 v{80+i}, v{64+i}, v{70+i}, vcc")
    E("    v_mul_u32_u24 v8, 24, v11")
    E("    v_add_u32 v5, v5, v8")
    for i in range(4):
        E(f"    buffer_store_dwordx2 v[{80+2*i}:{81+2*i}], v5, s[40:43], 0 offen offset:{8*i}")

def layernorm_regs(XB, n):
    E("    s_mov_b32 s26, 0x3f803f80")
    for r in (9, 10, 11, 13):
        E(f"    v_mov_b32 v{r}, 0")
    for i in range(n):
        E(f"    v_dot2_f32_bf16 v{9 + (i&1)}, v{XB+i}, s26, v{9 + (i&1)}")
        E(f"    v_dot2_f32_bf16 v{11 if i&1 else 13}, v{XB+i}, v{XB+i}, v{11 if i&1 else 13}")
    E("    s_nop 3")
    E("    v_add_f32 v9, v9, v10")
    E("    v_add_f32 v11, v11, v13")
    E("    v_xor_b32 v12, 32, v1")
    E("    v_lshlrev_b32 v12, 2, v12")
    E("    ds_bpermute_b32 v10, v12, v9")
    E("    ds_bpermute_b32 v13, v12, v11")
    E("    s_waitcnt lgkmcnt(0)")
    E("    v_add_f32 v9, v9, v10")
    E("    v_add_f32 v11, v11, v13")
    E(f"    v_mul_f32 v9, {1.0/D!r}, v9")
    E(f"    v_mul_f32 v11, {1.0/D!r}, v11")
    E("    v_fma_f32 v11, -v9, v9, v11")
    E("    v_max_f32 v11, 0, v11")
    E(f"    v_add_f32 v11, {1e-5!r}, v11")
    E("    v_rsq_f32 v15, v11")
    E("    s_nop 0")
    E("    v_mul_f32 v14, v9, v15")
    for i in range(n):
        E(f"    v_lshlrev_b32 v10, 16, v{XB+i}")
        E(f"    v_and_b32 v11, 0xffff0000, v{XB+i}")
        E("    v_fma_f32 v10, v10, v15, -v14")
        E("    v_fma_f32 v11, v11, v15, -v14")
        E(f"    v_cvt_pk_bf16_f32 v{XB+i}, v10, v11")

def main():
    E('.amdgcn_target "amdgcn-amd-amdhsa--gfx950"')
    E(".text")
    launches = []
    g1 = Gemm("k1_qkv_kernel", 448, 32, [('wqkv', NQKV*2)]*3, 3, 1, 2, True,
              dict(kind='attn', dst='o', ld=D*2), 'x', D*2, 32, 8, 0, 5)
    n, lds = gen_gemm(g1); launches.append((g1.name, n, 256, lds))
    g2 = Gemm("k2_wo_kernel", 448, 64, [('wo', D*2)], 2, 2, 2, False,
              dict(kind='res', dst='h', res='x', ld=D*2), 'o', D*2, 32, 7, 0, 7)
    n, lds = gen_gemm(g2); launches.append((g2.name, n, 256, lds))
    g3 = Gemm("k3_gu_kernel", 448, 32, [('wg', F*2), ('wu', F*2)], 4, 1, 4, True,
              dict(kind='swiglu', dst='act', ld=F*2), 'h', D*2, 16, 14, 0, 3, True)
    n, lds = gen_gemm(g3); launches.append((g3.name, n, 256, lds))
    g4 = Gemm("k4_down_kernel", 1792, 64, [('wd', D*2)], 2, 2, 2, False,
              dict(kind='res', dst='out', res='h', ld=D*2), 'act', F*2, 32, 7, 0, 4, False, True)
    n, lds = gen_gemm(g4); launches.append((g4.name, n, 256, lds))
    hdr = open('sequential_preLN__sliding_local_dilated__swiglu_ffn__prompt.s.ref').read().split('\n')
    head = [l for l in hdr if l.startswith(';') and '@launch' not in l and 'Override launch' not in l and 'grid=ceil' not in l]
    for (nm, n, b, lds) in launches:
        head.append(f"; @launch kernel={nm} grid=({n},1,1) block=({b},1,1) lds={lds}")
    txt = '\n'.join(head + out) + '\n'
    dst = sys.argv[1] if len(sys.argv) > 1 else 'sequential_preLN__sliding_local_dilated__swiglu_ffn__prompt.s'
    open(dst, 'w').write(txt)
    print("wrote", dst, len(txt), "bytes")

main()
```

```python
import sys, os

S_ROWS, D, F = 2048, 448, 1792
NQKV = 3 * D
WS_O = 0x600000
WS_H = 0x800000
WS_ACT = 0xA00000
NW = 8

out = []
def E(s=""):
    out.append(s)
STAMP = os.environ.get("STAMP", "")
class St:
    n = 0
    on = False
def stamp():
    if not St.on: return
    E("    s_waitcnt lgkmcnt(0)")
    E(f"    s_memtime s[{60+2*St.n}:{61+2*St.n}]")
    E("    s_waitcnt lgkmcnt(0)")
    St.n += 1
def stamp_dump():
    if not St.on: return
    E("    s_waitcnt vmcnt(0)")
    stamp()
    E("    s_load_dwordx2 s[96:97], s[0:1], 64")
    E("    s_waitcnt lgkmcnt(0)")
    E("    s_mov_b32 s98, 256")
    E("    s_mov_b32 s99, 0x00020000")
    E("    s_and_b32 s97, s97, 0xffff")
    E("    s_memrealtime s[90:91]")
    E("    s_waitcnt lgkmcnt(0)")
    E("    s_add_u32 s92, s20, 0x4000000")
    E("    s_addc_u32 s93, s21, 0")
    E("    s_and_b32 s93, s93, 0xffff")
    E("    s_mov_b32 s94, 0x10000")
    E("    s_mov_b32 s95, 0x00020000")
    E("    s_lshl_b32 s87, s2, 4")
    E("    v_mov_b32 v1, s87")
    E("    v_mov_b32 v2, s60")
    E(f"    v_mov_b32 v3, s{60+2*(St.n-1)}")
    E("    v_mov_b32 v4, s88")
    E("    v_mov_b32 v5, s90")
    E("    s_cmp_lg_u32 s50, 0")
    E("    s_cbranch_scc1 9f")
    E("    buffer_store_dwordx4 v[2:5], v1, s[92:95], 0 offen")
    E("    s_cmp_lg_u32 s2, 0")
    E("    s_cbranch_scc1 9f")
    E("    s_cmp_lg_u32 s50, 0")
    E("    s_cbranch_scc1 9f")
    E("    v_mov_b32 v1, 0")
    for i in range(St.n-1, -1, -1):
        E(f"    v_mov_b32 v2, s{60+2*i}")
        E(f"    buffer_store_dword v2, v1, s[96:99], 0 offen offset:{4*i}")
    E("9:")
    St.on = False

PTR = {'x': (4, 5, S_ROWS*D*2, None), 'wqkv': (6, 7, D*NQKV*2, None), 'wo': (8, 9, D*D*2, None),
       'wg': (12, 13, D*F*2, None), 'wu': (14, 15, D*F*2, None), 'wd': (16, 17, F*D*2, None),
       'out': (18, 19, S_ROWS*D*2, None),
       'o': (20, 21, S_ROWS*D*2, WS_O), 'h': (20, 21, S_ROWS*D*2, WS_H), 'act': (20, 21, S_ROWS*F*2, WS_ACT)}
def mk(dst, key):
    lo, hi, size, off = PTR[key]
    if off is None:
        E(f"    s_mov_b32 s{dst}, s{lo}")
        E(f"    s_and_b32 s{dst+1}, s{hi}, 0xffff")
    else:
        E(f"    s_add_u32 s{dst}, s{lo}, {off}")
        E(f"    s_addc_u32 s{dst+1}, s{hi}, 0")
        E(f"    s_and_b32 s{dst+1}, s{dst+1}, 0xffff")
    E(f"    s_mov_b32 s{dst+2}, {size}")
    E(f"    s_mov_b32 s{dst+3}, 0x00020000")

def kernel_desc(name, nvgpr, accum_offset):
    E('.section .rodata,"a"')
    E(".p2align 6")
    E(f".amdhsa_kernel {name}")
    E(f"  .amdhsa_next_free_vgpr {nvgpr}")
    E(f"  .amdhsa_next_free_sgpr 102")
    E(f"  .amdhsa_accum_offset {accum_offset}")
    E("  .amdhsa_group_segment_fixed_size 0")
    E("  .amdhsa_kernarg_size 80")
    E("  .amdhsa_user_sgpr_count 2")
    E("  .amdhsa_user_sgpr_kernarg_segment_ptr 1")
    E("  .amdhsa_system_sgpr_workgroup_id_x 1")
    E(".end_amdhsa_kernel")
    E(".text")

def div_const(dst, src, d, maxv, tmp_s):
    if d & (d - 1) == 0:
        E(f"    v_lshrrev_b32 v{dst}, {d.bit_length()-1}, v{src}")
        return
    sh = 20
    M = (1 << sh) // d + 1
    for x in range(maxv):
        assert (x * M) >> sh == x // d, (x, d)
    assert maxv * M < (1 << 32)
    E(f"    s_mov_b32 s{tmp_s}, {M}")
    E(f"    v_mul_lo_u32 v{dst}, v{src}, s{tmp_s}")
    E(f"    v_lshrrev_b32 v{dst}, {sh}, v{dst}")

class VM:
    def __init__(self):
        self.q = []
    def issue(self, tag, n):
        self.q.append([tag, n])
    def wait(self, tag):
        idx = max(i for i, (t, n) in enumerate(self.q) if t == tag)
        after = sum(n for (t, n) in self.q[idx+1:])
        E(f"    s_waitcnt vmcnt({min(after, 63)})")
        self.q = self.q[idx+1:]

def prologue(name, nwg, n_mb, n_nb, nmajor):
    E(f".globl {name}")
    E(".p2align 8")
    E(f".type {name},@function")
    E(f"{name}:")
    St.on = (STAMP == name); St.n = 0
    E(f"    s_cmp_ge_u32 s2, {nwg}")
    E(f"    s_cbranch_scc1 {name}_done")
    stamp()
    if St.on:
        E("    s_memrealtime s[88:89]")
    E("    s_load_dwordx4 s[4:7], s[0:1], 0")
    E("    s_load_dwordx4 s[8:11], s[0:1], 16")
    E("    s_load_dwordx4 s[12:15], s[0:1], 32")
    E("    s_load_dwordx4 s[16:19], s[0:1], 48")
    E("    s_load_dwordx2 s[20:21], s[0:1], 72")
    E("    s_and_b32 s22, s2, 7")
    E(f"    s_mul_i32 s22, s22, {nwg//8}")
    E("    s_lshr_b32 s23, s2, 3")
    E("    s_add_u32 s3, s22, s23")
    if nmajor:
        E(f"    s_mov_b32 s22, {(1<<32)//n_mb + 1}")
        E("    s_mul_hi_u32 s24, s3, s22")
        E(f"    s_mul_i32 s23, s24, {n_mb}")
        E("    s_sub_u32 s23, s3, s23")
    else:
        E(f"    s_mov_b32 s22, {(1<<32)//n_nb + 1}")
        E("    s_mul_hi_u32 s23, s3, s22")
        E(f"    s_mul_i32 s24, s23, {n_nb}")
        E("    s_sub_u32 s24, s3, s24")
    E("    v_and_b32 v1, 63, v0")
    E("    v_lshrrev_b32 v2, 6, v0")
    E("    v_lshrrev_b32 v7, 5, v1")
    E("    v_readfirstlane_b32 s50, v2")
    E("    s_waitcnt lgkmcnt(0)")
    E("    s_lshl_b32 s51, s50, 10")
    stamp()

def dma(voff, srd_, soff, ldsimm):
    E(f"    s_add_u32 m0, s51, {ldsimm}")
    E("    s_nop 0")
    E(f"    buffer_load_dwordx4 {voff}, {srd_}, {soff} offen lds")

def wdma_voffset(dst, RB, ldw):
    if RB == 256:
        E("    v_lshrrev_b32 v12, 4, v1")
        E("    v_lshl_add_u32 v13, v2, 2, v12")
        E(f"    s_mov_b32 s48, {ldw}")
        E("    v_mul_lo_u32 v13, v13, s48")
        E("    v_bfe_u32 v14, v1, 2, 2")
        E("    v_xor_b32 v14, v14, v12")
        E("    v_lshl_add_u32 v13, v14, 6, v13")
        E("    v_and_b32 v14, 3, v1")
        E(f"    v_lshl_add_u32 v{dst}, v14, 4, v13")
        return 32
    else:
        E("    v_lshrrev_b32 v12, 3, v1")
        E("    v_lshl_add_u32 v13, v2, 3, v12")
        E(f"    s_mov_b32 s48, {ldw}")
        E("    v_mul_lo_u32 v13, v13, s48")
        E("    v_bfe_u32 v14, v1, 2, 1")
        E("    v_bfe_u32 v15, v1, 4, 1")
        E("    v_xor_b32 v14, v14, v15")
        E("    v_lshl_add_u32 v13, v14, 6, v13")
        E("    v_and_b32 v14, 3, v1")
        E(f"    v_lshl_add_u32 v{dst}, v14, 4, v13")
        return 64

def tr_base(dst, RB, base_imm, krow_v=None):
    E("    v_bfe_u32 v8, v1, 2, 2")
    E(f"    v_lshl_add_u32 v{dst}, v7, 3, v8")
    if krow_v is not None:
        E(f"    v_lshl_add_u32 v{dst}, v{krow_v}, 4, v{dst}")
    E(f"    v_lshlrev_b32 v{dst}, {RB.bit_length()-1}, v{dst}")
    E("    v_bfe_u32 v10, v1, 4, 1")
    E(f"    v_lshl_add_u32 v{dst}, v10, 5, v{dst}")
    E("    v_and_b32 v10, 3, v1")
    E(f"    v_lshl_add_u32 v{dst}, v10, 3, v{dst}")
    E(f"    v_add_u32 v{dst}, {base_imm}, v{dst}")
    if RB == 128:
        E("    v_bfe_u32 v8, v1, 3, 1")

def xfull_dma(nrows, vm):
    npieces = nrows * 56
    n = -(-npieces // (64*NW))
    for i in range(n):
        E(f"    v_add_u32 v12, {64*NW*i}, v0")
        div_const(13, 12, 56, 64*NW*n, 48)
        E("    v_mul_u32_u24 v14, 56, v13")
        E("    v_sub_u32 v14, v12, v14")
        E("    v_bfe_u32 v15, v13, 1, 3")
        E("    v_xor_b32 v14, v14, v15")
        E("    v_mul_u32_u24 v13, 896, v13")
        E("    v_lshl_add_u32 v13, v14, 4, v13")
        E("    v_add_u32 v13, s26, v13")
        dma("v13", "s[28:31]", "0", 1024*NW*i)
    vm.issue('x', n)
    return n * 1024 * NW

def xfrag_addrs(XA, rowv):
    E(f"    v_mul_u32_u24 v9, 896, v{rowv}")
    E(f"    v_bfe_u32 v8, v{rowv}, 1, 3")
    for t in range(4):
        E(f"    v_add_u32 v10, {2*t}, v7")
        E("    v_xor_b32 v10, v10, v8")
        E(f"    v_lshl_add_u32 v{XA+t}, v10, 4, v9")

def layernorm_stats(XB, n, RS_, MR_):
    E("    s_mov_b32 s26, 0x3f803f80")
    for r in (9, 10, 11, 13):
        E(f"    v_mov_b32 v{r}, 0")
    for i in range(n):
        E(f"    v_dot2_f32_bf16 v{9 + (i&1)}, v{XB+i}, s26, v{9 + (i&1)}")
        E(f"    v_dot2_f32_bf16 v{11 if i&1 else 13}, v{XB+i}, v{XB+i}, v{11 if i&1 else 13}")
    E("    s_nop 3")
    E("    v_add_f32 v9, v9, v10")
    E("    v_add_f32 v11, v11, v13")
    E("    v_xor_b32 v12, 32, v1")
    E("    v_lshlrev_b32 v12, 2, v12")
    E("    ds_bpermute_b32 v10, v12, v9")
    E("    ds_bpermute_b32 v13, v12, v11")
    E("    s_waitcnt lgkmcnt(0)")
    E("    v_add_f32 v9, v9, v10")
    E("    v_add_f32 v11, v11, v13")
    E(f"    v_mul_f32 v9, {1.0/D!r}, v9")
    E(f"    v_mul_f32 v11, {1.0/D!r}, v11")
    E("    v_fma_f32 v11, -v9, v9, v11")
    E("    v_max_f32 v11, 0, v11")
    E(f"    v_add_f32 v11, {1e-5!r}, v11")
    E(f"    v_rsq_f32 v{RS_}, v11")
    E("    s_nop 0")
    E(f"    v_mul_f32 v{MR_}, v9, v{RS_}")

def norm_ops(XB, ks, RS_, MR_):
    ops = []
    for i in range(4*ks, 4*ks+4):
        ops.append(f"    v_lshlrev_b32 v10, 16, v{XB+i}")
        ops.append(f"    v_and_b32 v11, 0xffff0000, v{XB+i}")
        ops.append(f"    v_fma_f32 v10, v10, v{RS_}, -v{MR_}")
        ops.append(f"    v_fma_f32 v11, v11, v{RS_}, -v{MR_}")
        ops.append(f"    v_cvt_pk_bf16_f32 v{XB+i}, v10, v11")
    ops.append("    s_nop 1")
    return ops

def prefetch(pf, nwg):
    if not pf: return
    nper = nwg // 8
    E("    s_lshr_b32 s52, s2, 3")
    E("    s_and_b32 s53, s2, 7")
    for (key, kind) in pf:
        mk(56, key)
        size = PTR[key][2]
        if kind == 'all':
            lines = size // 128
            per = -(-lines // nper)
            n = -(-per // 512)
            E(f"    s_mul_i32 s54, s52, {per*128}")
            E("    v_lshlrev_b32 v9, 7, v0")
            for i in range(n):
                E(f"    s_add_u32 s55, s54, {i*512*128}")
                E("    buffer_load_dword v15, v9, s[56:59], s55 offen")
        else:
            E("    s_mul_i32 s54, s53, 28")
            E("    s_lshr_b32 s54, s54, 4")
            E("    s_lshl_b32 s54, s54, 8")
            E(f"    s_mul_i32 s55, s52, {16*3584}")
            E("    s_add_u32 s54, s54, s55")
            div_const(9, 0, 6, 512, 55)
            E("    v_mul_u32_u24 v10, 6, v9")
            E("    v_sub_u32 v10, v0, v10")
            E("    v_mul_u32_u24 v9, 3584, v9")
            E("    v_lshl_add_u32 v9, v10, 7, v9")
            E("    v_cmp_gt_u32 vcc, 96, v0")
            E("    s_and_saveexec_b64 s[92:93], vcc")
            E("    buffer_load_dword v15, v9, s[56:59], s54 offen")
            E("    s_mov_b64 exec, s[92:93]")

XB = 16
DEPTH = 6
WF = XB + 112
TMPB = WF + DEPTH*4
MFMA = "v_mfma_f32_32x32x16_bf16"

def mainloop_fullx(nchunks, ksc, R, stage, vm, units_of, ln, RS_, MR_, nfill=3, staged0=0):
    fill = []
    nxt = [staged0]
    units = []
    for c in range(nchunks):
        for uu in units_of(c):
            units.append((c,) + uu)
    n = len(units)
    def rd(u):
        c, ks, av, off, a, RB = units[u]
        r = WF + (u % DEPTH)*4
        if os.environ.get("NOREAD"): return
        E(f"    ds_read_b64_tr_b16 v[{r}:{r+1}], v{av} offset:{off}")
        E(f"    ds_read_b64_tr_b16 v[{r+2}:{r+3}], v{av} offset:{off + 4*RB}")
    for u in range(DEPTH-1):
        rd(u)
    while nxt[0] < nchunks and nxt[0] <= R - 1:
        stage(nxt[0]); nxt[0] += 1
    lastks = None
    for u in range(n):
        c, ks, av, off, a, RB = units[u]
        if ln and ks != lastks:
            while fill: E(fill.pop(0))
            if ks + 1 < 28 and not os.environ.get("NOFILL"):
                fill.extend(norm_ops(XB, ks + 1, RS_, MR_))
            lastks = ks
        if u + DEPTH - 1 < n:
            rd(u + DEPTH - 1)
            left = DEPTH - 1
        else:
            left = n - 1 - u
        E(f"    s_waitcnt lgkmcnt({2*left})")
        r = WF + (u % DEPTH)*4
        xr = XB + ks*4
        if not os.environ.get("NOMFMA"):
            E(f"    {MFMA} a[{a*16}:{a*16+15}], v[{r}:{r+3}], v[{xr}:{xr+3}], a[{a*16}:{a*16+15}]")
        for _ in range(nfill):
            if fill: E(fill.pop(0))
        if u + 1 < n and units[u+1][0] != c:
            lst = os.environ.get("LOOPST") and c in (5, 6)
            if lst: stamp()
            if c + 2 < nchunks:
                vm.wait(('w', c+2))
            if lst: stamp()
            E("    s_barrier")
            if lst: stamp()
            while nxt[0] < nchunks and nxt[0] <= c + R:
                stage(nxt[0]); nxt[0] += 1

def gen_k3():
    name = "k3_gu_kernel"
    n_mb, n_nb = 16, 14
    nwg = n_mb * n_nb
    KC, R, RB = 32, 10, 256
    nchunks = 448 // KC
    wsrcb = KC * RB
    bufb = 2 * wsrcb
    vm = VM()
    WA, XA, WG, RS_, MR_, EW = TMPB, TMPB+6, TMPB+10, TMPB+11, TMPB+12, TMPB+13
    T = TMPB + 14
    def slot(c):
        sl = c % R
        if sl < 3: return 0, sl*bufb, 114688 + sl*bufb
        if sl < 7: return 1, (sl-3)*bufb, (sl-3)*bufb
        return 2, (sl-7)*bufb, 65536 + (sl-7)*bufb
    ACC0 = 192
    prologue(name, nwg, n_mb, n_nb, True)
    mk(28, 'h'); mk(32, 'wg'); mk(36, 'wu'); mk(40, 'act')
    E("    v_and_b32 v3, 3, v2")
    E("    v_lshrrev_b32 v4, 2, v2")
    E("    s_lshl_b32 s25, s23, 7")
    E("    s_mul_i32 s26, s25, 896")
    E("    s_lshl_b32 s27, s24, 8")
    XOFF = xfull_dma(128, vm)
    stamp()
    rpi = wdma_voffset(WG, RB, F*2)
    E(f"    v_add_u32 v{WG}, s27, v{WG}")
    LINW = os.environ.get("LINW")
    if LINW:
        E(f"    v_lshlrev_b32 v{WG}, 4, v0")
        E(f"    s_mul_i32 s27, s24, {14*8192}")
        E(f"    v_add_u32 v{WG}, s27, v{WG}")
    def stage(c):
        b = slot(c)[2]
        for si in range(2):
            E(f"    s_mov_b32 s48, {c*8192 if LINW else c*KC*F*2}")
            dma(f"v{WG}", f"s[{32+4*si}:{35+4*si}]", "s48", b + si*wsrcb)
        vm.issue(('w', c), 2)
    for c in range(3):
        stage(c)
    E("    v_and_b32 v5, 31, v1")
    E("    v_lshl_add_u32 v5, v3, 5, v5")
    tr_base(9, RB, 0)
    for j in range(2):
        E(f"    v_lshl_add_u32 v10, v4, 1, {j}")
        E("    v_xor_b32 v10, v10, v8")
        E(f"    v_lshl_add_u32 v{WA+2+j}, v10, 6, v9")
        E(f"    v_add_u32 v{WA+j}, {XOFF}, v{WA+2+j}")
        E(f"    v_add_u32 v{WA+4+j}, 65536, v{WA+2+j}")
    xfrag_addrs(XA, 5)
    for r in range(64):
        E(f"    v_accvgpr_write_b32 a{r}, 0")
    vm.wait('x')
    stamp()
    E("    s_barrier")
    for s in range(28):
        E(f"    ds_read_b128 v[{XB+4*s}:{XB+4*s+3}], v{XA + (s&3)} offset:{128*(s>>2)}")
    E("    s_waitcnt lgkmcnt(0)")
    stamp()
    layernorm_stats(XB, 112, RS_, MR_)
    for ins in norm_ops(XB, 0, RS_, MR_): E(ins)
    stamp()
    vm.wait(('w', 1))
    E("    s_barrier")
    stamp()
    def units_of(c):
        rs, b, _ = slot(c)
        return [(c*2 + s, WA + 2*rs + j, b + s*16*RB + si*wsrcb, si*2 + j, RB)
                for s in range(2) for si in range(2) for j in range(2)]
    mainloop_fullx(nchunks, 2, R, stage, vm, units_of, True, RS_, MR_, nfill=6, staged0=3)
    stamp()
    prefetch([('wd', 'all')], nwg)
    E("    s_nop 15")
    E("    s_barrier")
    RS = 144
    E(f"    v_mul_u32_u24 v{EW}, {32*RS}, v2")
    E("    v_and_b32 v11, 31, v1")
    E(f"    v_mul_u32_u24 v11, {RS}, v11")
    E(f"    v_add_u32 v{EW}, v{EW}, v11")
    E(f"    v_lshl_add_u32 v{EW}, v7, 3, v{EW}")
    for jj in range(2):
        for q in range(4):
            jg, ju = jj, 2 + jj
            TT = T + 12*(q & 1)
            for r in range(4):
                E(f"    v_accvgpr_read_b32 v{TT+r}, a{jg*16 + 4*q+r}")
            for r in range(4):
                E(f"    v_accvgpr_read_b32 v{TT+8+r}, a{ju*16 + 4*q+r}")
            for r in range(4):
                E(f"    v_mul_f32 v{TT+4+r}, 0xbfb8aa3b, v{TT+r}")
            for r in range(4):
                E(f"    v_exp_f32 v{TT+4+r}, v{TT+4+r}")
            for r in range(4):
                E(f"    v_mul_f32 v{TT+r}, v{TT+r}, v{TT+8+r}")
            for r in range(4):
                E(f"    v_add_f32 v{TT+4+r}, 1.0, v{TT+4+r}")
            for r in range(4):
                E(f"    v_rcp_f32 v{TT+4+r}, v{TT+4+r}")
            E("    s_nop 0")
            for r in range(4):
                E(f"    v_mul_f32 v{TT+r}, v{TT+r}, v{TT+4+r}")
            E(f"    v_cvt_pk_bf16_f32 v{TT+4}, v{TT}, v{TT+1}")
            E(f"    v_cvt_pk_bf16_f32 v{TT+5}, v{TT+2}, v{TT+3}")
            E(f"    ds_write_b64 v{EW}, v[{TT+4}:{TT+5}] offset:{jj*64 + q*16}")
    E("    v_lshrrev_b32 v11, 3, v1")
    E("    v_and_b32 v12, 7, v1")
    E(f"    v_mul_u32_u24 v13, {32*RS}, v2")
    E(f"    v_mul_u32_u24 v14, {RS}, v11")
    E("    v_add_u32 v13, v13, v14")
    E("    v_lshl_add_u32 v13, v12, 4, v13")
    E("    v_lshl_add_u32 v14, v3, 5, v11")
    E("    v_add_u32 v14, s25, v14")
    E(f"    s_mov_b32 s26, {F*2}")
    E("    v_mul_lo_u32 v14, v14, s26")
    E("    v_lshl_add_u32 v14, v12, 4, v14")
    E("    v_lshl_add_u32 v14, v4, 7, v14")
    E("    v_add_u32 v14, s27, v14")
    E("    s_waitcnt lgkmcnt(0)")
    for i in range(4):
        E(f"    ds_read_b128 v[{XB+4*i}:{XB+4*i+3}], v13 offset:{i*8*RS}")
    for i in range(4):
        E(f"    s_waitcnt lgkmcnt({3-i})")
        E(f"    s_mov_b32 s48, {i*8*F*2}")
        E(f"    buffer_store_dwordx4 v[{XB+4*i}:{XB+4*i+3}], v14, s[40:43], s48 offen")
    stamp_dump()
    E(f"{name}_done:")
    E("    s_endpgm")
    kernel_desc(name, ACC0 + 64, ACC0)
    return name, nwg, XOFF + 3*bufb

QS = 400
def gen_k1():
    name = "k1_qkv_kernel"
    n_mb, n_nb = 32, 8
    nwg = n_mb * n_nb
    KC, R, RB = 64, 6, 128
    nchunks = 448 // KC
    wsrcb = KC * RB
    bufb = 3 * wsrcb
    vm = VM()
    WA, XA, WG, RS_, MR_ = TMPB, TMPB+6, TMPB+10, TMPB+11, TMPB+12
    T = TMPB + 14
    def slot(c):
        sl = c % R
        if sl < 3: return 0, sl*bufb, 90112 + sl*bufb
        return 1, (sl-3)*bufb, (sl-3)*bufb
    ACC0 = 192
    prologue(name, nwg, n_mb, n_nb, False)
    mk(28, 'x'); mk(32, 'wqkv'); mk(40, 'o')
    E("    v_add_u32 v12, 1, v2")
    E("    v_mul_u32_u24 v3, 43, v12")
    E("    v_lshrrev_b32 v3, 7, v3")
    E("    v_mul_u32_u24 v4, 3, v3")
    E("    v_sub_u32 v4, v12, v4")
    E("    s_lshl_b32 s25, s23, 6")
    E("    s_sub_i32 s25, s25, 32")
    E("    s_mul_i32 s26, s25, 896")
    E("    s_mul_i32 s27, s24, 112")
    XOFF = xfull_dma(96, vm)
    stamp()
    rpi = wdma_voffset(WG, RB, NQKV*2)
    E(f"    v_add_u32 v{WG}, s27, v{WG}")
    def stage(c):
        b = slot(c)[2]
        for si in range(3):
            E(f"    s_mov_b32 s48, {c*KC*NQKV*2 + si*896}")
            dma(f"v{WG}", "s[32:35]", "s48", b + si*wsrcb)
        vm.issue(('w', c), 3)
    for c in range(3):
        stage(c)
    E("    v_and_b32 v5, 31, v1")
    E("    v_lshl_add_u32 v5, v3, 5, v5")
    tr_base(9, RB, 0)
    E(f"    v_mul_u32_u24 v11, {wsrcb}, v4")
    E("    v_add_u32 v9, v9, v11")
    for j in range(2):
        E(f"    v_xor_b32 v10, {j}, v8")
        E(f"    v_lshl_add_u32 v{WA+2+j}, v10, 6, v9")
        E(f"    v_add_u32 v{WA+j}, {XOFF}, v{WA+2+j}")
    xfrag_addrs(XA, 5)
    for r in range(32):
        E(f"    v_accvgpr_write_b32 a{r}, 0")
    vm.wait('x')
    stamp()
    E("    s_barrier")
    for s in range(28):
        E(f"    ds_read_b128 v[{XB+4*s}:{XB+4*s+3}], v{XA + (s&3)} offset:{128*(s>>2)}")
    E("    s_waitcnt lgkmcnt(0)")
    stamp()
    layernorm_stats(XB, 112, RS_, MR_)
    for ins in norm_ops(XB, 0, RS_, MR_): E(ins)
    stamp()
    vm.wait(('w', 1))
    E("    s_barrier")
    stamp()
    def units_of(c):
        rs, b, _ = slot(c)
        return [(c*4 + s, WA + 2*rs + j, b + s*16*RB, j, RB) for s in range(4) for j in range(2)]
    mainloop_fullx(nchunks, 4, R, stage, vm, units_of, True, RS_, MR_, nfill=11, staged0=3)
    stamp()
    prefetch([('wo', 'all')], nwg)
    E("    s_nop 15")
    E("    s_barrier")
    E(f"    v_mul_u32_u24 v10, {QS}, v5")
    E("    v_lshl_add_u32 v10, v7, 3, v10")
    E("    v_lshl_add_u32 v10, v4, 7, v10")
    for j in range(2):
        for q in range(4):
            for r in range(4):
                E(f"    v_accvgpr_read_b32 v{T+r}, a{j*16 + 4*q+r}")
            E(f"    v_cvt_pk_bf16_f32 v{T+4}, v{T}, v{T+1}")
            E(f"    v_cvt_pk_bf16_f32 v{T+5}, v{T+2}, v{T+3}")
            E(f"    ds_write_b64 v10, v[{T+4}:{T+5}] offset:{j*64 + q*16}")
    E("    s_waitcnt lgkmcnt(0)")
    E("    s_barrier")
    stamp()
    E("    v_lshrrev_b32 v3, 3, v0")
    E("    v_bfe_u32 v4, v0, 2, 1")
    E("    v_mul_u32_u24 v4, 56, v4")
    E("    v_and_b32 v11, 3, v0")
    E("    v_add_u32 v5, 32, v3")
    E(f"    v_mul_u32_u24 v5, {QS}, v5")
    E("    v_add_u32 v5, v5, v4")
    for i in range(7):
        E(f"    ds_read_b64 v[{16+2*i}:{17+2*i}], v5 offset:{8*i}")
    E(f"    v_mul_u32_u24 v6, {4*QS}, v11")
    E("    v_sub_u32 v6, v5, v6")
    E(f"    v_subrev_u32 v6, {2*QS}, v6")
    KB = 64
    for w in range(2):
        for i in range(7):
            r = KB + w*14 + 2*i
            E(f"    ds_read_b64 v[{r}:{r+1}], v6 offset:{(2-2*w)*QS + 128 + 8*i}")
    VB = 96
    for w in range(2):
        for i in range(7):
            r = VB + w*14 + 2*i
            E(f"    ds_read_b64 v[{r}:{r+1}], v6 offset:{(2-2*w)*QS + 256 + 8*i}")
    E("    s_lshl_b32 s26, s23, 6")
    E("    v_add_u32 v3, s26, v3")
    E("    v_lshlrev_b32 v12, 2, v11")
    E("    v_sub_u32 v12, v3, v12")
    E("    v_mov_b32 v48, 0")
    E("    v_mov_b32 v49, 0")
    E("    s_waitcnt lgkmcnt(14)")
    for i in range(14):
        for w in range(2):
            E(f"    v_dot2_f32_bf16 v{48+w}, v{KB + w*14 + i}, v{16+i}, v{48+w}")
    E("    v_mov_b32 v8, 0xce6e6b28")
    E("    s_nop 2")
    for w in range(2):
        E(f"    v_mul_f32 v{48+w}, {28**-0.5!r}, v{48+w}")
        E(f"    v_cmp_gt_i32 vcc, {2*w}, v12")
        E("    s_nop 1")
        E(f"    v_cndmask_b32 v{48+w}, v{48+w}, v8, vcc")
    E("    v_max_f32 v56, v48, v49")
    E("    s_nop 1")
    E("    v_max_f32_dpp v56, v56, v56 quad_perm:[1,0,3,2] row_mask:0xf bank_mask:0xf")
    E("    s_nop 1")
    E("    v_max_f32_dpp v56, v56, v56 quad_perm:[2,3,0,1] row_mask:0xf bank_mask:0xf")
    for w in range(2):
        E(f"    v_sub_f32 v{48+w}, v{48+w}, v56")
        E(f"    v_mul_f32 v{48+w}, 0x3fb8aa3b, v{48+w}")
        E(f"    v_exp_f32 v{48+w}, v{48+w}")
    E("    s_nop 0")
    E("    v_add_f32 v57, v48, v49")
    E("    s_nop 1")
    E("    v_add_f32_dpp v57, v57, v57 quad_perm:[1,0,3,2] row_mask:0xf bank_mask:0xf")
    E("    s_nop 1")
    E("    v_add_f32_dpp v57, v57, v57 quad_perm:[2,3,0,1] row_mask:0xf bank_mask:0xf")
    E("    v_rcp_f32 v57, v57")
    E("    s_nop 0")
    for w in range(2):
        E(f"    v_mul_f32 v{48+w}, v{48+w}, v57")
    E("    s_waitcnt lgkmcnt(0)")
    for w in range(2):
        for i in range(14):
            r = VB + w*14 + i
            E(f"    v_lshlrev_b32 v8, 16, v{r}")
            E(f"    v_and_b32 v9, 0xffff0000, v{r}")
            if w == 0:
                E(f"    v_mul_f32 v{16+2*i}, v8, v{48+w}")
                E(f"    v_mul_f32 v{17+2*i}, v9, v{48+w}")
            else:
                E(f"    v_fmac_f32 v{16+2*i}, v8, v{48+w}")
                E(f"    v_fmac_f32 v{17+2*i}, v9, v{48+w}")
    E("    s_nop 1")
    for i in range(28):
        E(f"    v_add_f32_dpp v{16+i}, v{16+i}, v{16+i} quad_perm:[1,0,3,2] row_mask:0xf bank_mask:0xf")
    E("    s_nop 1")
    for i in range(28):
        E(f"    v_add_f32_dpp v{16+i}, v{16+i}, v{16+i} quad_perm:[2,3,0,1] row_mask:0xf bank_mask:0xf")
    for i in range(14):
        E(f"    v_cvt_pk_bf16_f32 v{64+i}, v{16+2*i}, v{17+2*i}")
    E("    v_mov_b32 v78, 0")
    E("    v_mov_b32 v79, 0")
    E(f"    v_mul_u32_u24 v5, {D*2}, v3")
    E("    v_add_u32 v5, v5, v4")
    E("    v_add_u32 v5, s27, v5")
    E("    v_lshl_add_u32 v5, v11, 4, v5")
    for k in range(1, 4):
        E(f"    v_cmp_eq_u32 vcc, {k}, v11")
        E("    s_nop 1")
        for i in range(4):
            E(f"    v_cndmask_b32 v{64+i}, v{64+i}, v{64+4*k+i}, vcc")
    E("    buffer_store_dwordx2 v[64:65], v5, s[40:43], 0 offen")
    E("    v_cmp_gt_u32 vcc, 3, v11")
    E("    s_and_saveexec_b64 s[92:93], vcc")
    E("    buffer_store_dwordx2 v[66:67], v5, s[40:43], 0 offen offset:8")
    E("    s_mov_b64 exec, s[92:93]")
    stamp_dump()
    E(f"{name}_done:")
    E("    s_endpgm")
    kernel_desc(name, ACC0 + 32, ACC0)
    return name, nwg, max(XOFF + 3*bufb, 96*QS)

def gen_ks(name, K, xsrc, x_ld, wkey, dst, res, pf):
    n_mb, n_nb = 32, 7
    nwg = n_mb * n_nb
    KC, R, RB = 64, 8, 128
    nchunks = K // KC
    R = min(R, nchunks)
    bufb = 16384
    vm = VM()
    WA, XA, WG, XG = 40, 44, 46, 47
    T = 100
    ACC0 = 128
    prologue(name, nwg, n_mb, n_nb, False)
    mk(28, xsrc); mk(32, wkey); mk(40, dst); mk(44, res)
    E("    v_and_b32 v3, 3, v2")
    E("    v_lshrrev_b32 v4, 2, v2")
    E("    s_lshl_b32 s25, s23, 6")
    E(f"    s_mul_i32 s26, s25, {x_ld}")
    E("    s_lshl_b32 s27, s24, 7")
    E("    v_lshrrev_b32 v12, 3, v1")
    E("    v_lshl_add_u32 v12, v2, 3, v12")
    E(f"    s_mov_b32 s48, {x_ld}")
    E("    v_mul_lo_u32 v12, v12, s48")
    E("    v_and_b32 v13, 1, v2")
    E("    v_lshlrev_b32 v13, 2, v13")
    E("    v_lshrrev_b32 v14, 4, v1")
    E("    v_add_u32 v13, v13, v14")
    E("    v_and_b32 v14, 7, v1")
    E("    v_xor_b32 v13, v13, v14")
    E(f"    v_lshl_add_u32 v{XG}, v13, 4, v12")
    E(f"    v_add_u32 v{XG}, s26, v{XG}")
    wdma_voffset(WG, RB, D*2)
    E(f"    v_add_u32 v{WG}, s27, v{WG}")
    def stage(c):
        b = (c % R) * bufb
        E(f"    s_mov_b32 s48, {c*KC*D*2}")
        dma(f"v{WG}", "s[32:35]", "s48", b)
        E(f"    s_mov_b32 s48, {c*KC*2}")
        dma(f"v{XG}", "s[28:31]", "s48", b + 8192)
        vm.issue(('w', c), 2)
    for c in range(R-1):
        stage(c)
    stamp()
    tr_base(9, RB, 0, krow_v=3)
    for j in range(2):
        E(f"    v_xor_b32 v10, {j}, v8")
        E(f"    v_lshl_add_u32 v{WA+j}, v10, 6, v9")
        E(f"    v_add_u32 v{WA+2+j}, 65536, v{WA+j}")
    E("    v_and_b32 v5, 31, v1")
    E("    v_lshl_add_u32 v5, v4, 5, v5")
    E("    v_lshlrev_b32 v9, 7, v5")
    E("    v_bfe_u32 v8, v5, 1, 3")
    E("    v_lshl_add_u32 v10, v3, 1, v7")
    E("    v_xor_b32 v10, v10, v8")
    E(f"    v_lshl_add_u32 v{XA}, v10, 4, v9")
    E(f"    v_add_u32 v{XA}, 8192, v{XA}")
    E(f"    v_add_u32 v{XA+1}, 65536, v{XA}")
    for r in range(32):
        E(f"    v_accvgpr_write_b32 a{r}, 0")
    vm.wait(('w', 1))
    E("    s_barrier")
    stamp()
    def rdc(c):
        hi, b = divmod((c % R) * bufb, 65536)
        rb = 16 + (c & 1) * 12
        E(f"    ds_read_b128 v[{rb}:{rb+3}], v{XA+hi} offset:{b}")
        for j in range(2):
            E(f"    ds_read_b64_tr_b16 v[{rb+4+4*j}:{rb+5+4*j}], v{WA+2*hi+j} offset:{b}")
            E(f"    ds_read_b64_tr_b16 v[{rb+6+4*j}:{rb+7+4*j}], v{WA+2*hi+j} offset:{b + 512}")
    rdc(0)
    if R - 1 < nchunks:
        stage(R - 1)
    for c in range(nchunks):
        rb = 16 + (c & 1) * 12
        if c + 1 < nchunks:
            rdc(c + 1)
            E("    s_waitcnt lgkmcnt(7)")
        else:
            E("    s_waitcnt lgkmcnt(2)")
        E(f"    {MFMA} a[0:15], v[{rb+4}:{rb+7}], v[{rb}:{rb+3}], a[0:15]")
        E(f"    s_waitcnt lgkmcnt({5 if c + 1 < nchunks else 0})")
        E(f"    {MFMA} a[16:31], v[{rb+8}:{rb+11}], v[{rb}:{rb+3}], a[16:31]")
        if c + 1 < nchunks:
            if c + 2 < nchunks:
                vm.wait(('w', c+2))
            E("    s_barrier")
            if c + R < nchunks:
                stage(c + R)
    stamp()
    prefetch(pf, nwg)
    E("    s_nop 15")
    E("    s_barrier")
    RS = 272
    WR = 64 * RS
    E(f"    v_mul_u32_u24 v10, {WR}, v3")
    E(f"    v_mul_u32_u24 v11, {RS}, v5")
    E("    v_add_u32 v10, v10, v11")
    E("    v_lshl_add_u32 v10, v7, 4, v10")
    for j in range(2):
        for q in range(4):
            for r in range(4):
                E(f"    v_accvgpr_read_b32 v{T+r}, a{j*16 + 4*q+r}")
            E(f"    ds_write_b128 v10, v[{T}:{T+3}] offset:{j*128 + q*32}")
    E("    v_lshrrev_b32 v11, 3, v1")
    E("    v_lshl_add_u32 v11, v2, 3, v11")
    E("    v_and_b32 v12, 7, v1")
    E(f"    v_mul_u32_u24 v13, {RS}, v11")
    E("    v_lshl_add_u32 v13, v12, 5, v13")
    E("    v_add_u32 v14, s25, v11")
    E(f"    s_mov_b32 s26, {D*2}")
    E("    v_mul_lo_u32 v14, v14, s26")
    E("    v_lshl_add_u32 v14, v12, 4, v14")
    E("    v_add_u32 v14, s27, v14")
    E("    buffer_load_dwordx4 v[80:83], v14, s[44:47], 0 offen")
    E("    s_waitcnt lgkmcnt(0)")
    E("    s_barrier")
    for w in range(4):
        E(f"    ds_read_b128 v[{48+8*w}:{51+8*w}], v13 offset:{w*WR}")
        E(f"    ds_read_b128 v[{52+8*w}:{55+8*w}], v13 offset:{w*WR + 16}")
    E("    s_waitcnt vmcnt(0) lgkmcnt(0)")
    for e in range(8):
        E(f"    v_add_f32 v{48+e}, v{48+e}, v{56+e}")
        E(f"    v_add_f32 v{64+e}, v{64+e}, v{72+e}")
        E(f"    v_add_f32 v{48+e}, v{48+e}, v{64+e}")
    for e in range(4):
        E(f"    v_lshlrev_b32 v{T}, 16, v{80+e}")
        E(f"    v_and_b32 v{T+1}, 0xffff0000, v{80+e}")
        E(f"    v_add_f32 v{T}, v{T}, v{48+2*e}")
        E(f"    v_add_f32 v{T+1}, v{T+1}, v{49+2*e}")
        E(f"    v_cvt_pk_bf16_f32 v{80+e}, v{T}, v{T+1}")
    E("    buffer_store_dwordx4 v[80:83], v14, s[40:43], 0 offen")
    stamp_dump()
    E(f"{name}_done:")
    E("    s_endpgm")
    kernel_desc(name, ACC0 + 32, ACC0)
    return name, nwg, max(R*bufb, 4*WR)

def main():
    E('.amdgcn_target "amdgcn-amd-amdhsa--gfx950"')
    E(".text")
    L = [gen_k1(),
         gen_ks("k2_wo_kernel", 448, 'o', D*2, 'wo', 'h', 'x', [('wg', 'gu'), ('wu', 'gu')]),
         gen_k3(),
         gen_ks("k4_down_kernel", 1792, 'act', F*2, 'wd', 'out', 'h', None)]
    hdr = open('sequential_preLN__sliding_local_dilated__swiglu_ffn__prompt.s.ref').read().split('\n')
    head = [l for l in hdr if l.startswith(';') and '@launch' not in l and 'Override launch' not in l and 'grid=ceil' not in l]
    for (nm, n, lds) in L:
        assert lds <= 163840, (nm, lds)
        head.append(f"; @launch kernel={nm} grid=({n},1,1) block=({64*NW},1,1) lds={lds}")
    txt = '\n'.join(head + out) + '\n'
    dst = sys.argv[1] if len(sys.argv) > 1 else 'sequential_preLN__sliding_local_dilated__swiglu_ffn__prompt.s'
    open(dst, 'w').write(txt)
    print("wrote", dst, len(txt), "bytes")

main()
```

```python
import sys, os

S_ROWS, D, F = 2048, 448, 1792
NQKV = 3 * D
WS_O = 0x600000
WS_H = 0x800000
WS_ACT = 0xA00000
NW = 8

out = []
def E(s=""):
    out.append(s)
STAMP = os.environ.get("STAMP", "")
class St:
    n = 0
    on = False
def stamp():
    if not St.on: return
    E("    s_waitcnt lgkmcnt(0)")
    E(f"    s_memtime s[{60+2*St.n}:{61+2*St.n}]")
    E("    s_waitcnt lgkmcnt(0)")
    St.n += 1
def stamp_dump():
    if not St.on: return
    E("    s_waitcnt vmcnt(0)")
    stamp()
    E("    s_load_dwordx2 s[96:97], s[0:1], 64")
    E("    s_waitcnt lgkmcnt(0)")
    E("    s_mov_b32 s98, 256")
    E("    s_mov_b32 s99, 0x00020000")
    E("    s_and_b32 s97, s97, 0xffff")
    E("    s_memrealtime s[90:91]")
    E("    s_waitcnt lgkmcnt(0)")
    E("    s_add_u32 s92, s20, 0x4000000")
    E("    s_addc_u32 s93, s21, 0")
    E("    s_and_b32 s93, s93, 0xffff")
    E("    s_mov_b32 s94, 0x10000")
    E("    s_mov_b32 s95, 0x00020000")
    E("    s_lshl_b32 s87, s2, 4")
    E("    v_mov_b32 v1, s87")
    E("    v_mov_b32 v2, s60")
    E(f"    v_mov_b32 v3, s{60+2*(St.n-1)}")
    E("    v_mov_b32 v4, s88")
    E("    v_mov_b32 v5, s90")
    E("    s_cmp_lg_u32 s50, 0")
    E("    s_cbranch_scc1 9f")
    E("    buffer_store_dwordx4 v[2:5], v1, s[92:95], 0 offen")
    E("    s_cmp_lg_u32 s2, 0")
    E("    s_cbranch_scc1 9f")
    E("    s_cmp_lg_u32 s50, 0")
    E("    s_cbranch_scc1 9f")
    E("    v_mov_b32 v1, 0")
    for i in range(St.n-1, -1, -1):
        E(f"    v_mov_b32 v2, s{60+2*i}")
        E(f"    buffer_store_dword v2, v1, s[96:99], 0 offen offset:{4*i}")
    E("9:")
    St.on = False

PTR = {'x': (4, 5, S_ROWS*D*2, None), 'wqkv': (6, 7, D*NQKV*2, None), 'wo': (8, 9, D*D*2, None),
       'wg': (12, 13, D*F*2, None), 'wu': (14, 15, D*F*2, None), 'wd': (16, 17, F*D*2, None),
       'out': (18, 19, S_ROWS*D*2, None),
       'o': (20, 21, S_ROWS*D*2, WS_O), 'h': (20, 21, S_ROWS*D*2, WS_H), 'act': (20, 21, S_ROWS*F*2, WS_ACT)}
def mk(dst, key):
    lo, hi, size, off = PTR[key]
    if off is None:
        E(f"    s_mov_b32 s{dst}, s{lo}")
        E(f"    s_and_b32 s{dst+1}, s{hi}, 0xffff")
    else:
        E(f"    s_add_u32 s{dst}, s{lo}, {off}")
        E(f"    s_addc_u32 s{dst+1}, s{hi}, 0")
        E(f"    s_and_b32 s{dst+1}, s{dst+1}, 0xffff")
    E(f"    s_mov_b32 s{dst+2}, {size}")
    E(f"    s_mov_b32 s{dst+3}, 0x00020000")

def kernel_desc(name, nvgpr, accum_offset):
    E('.section .rodata,"a"')
    E(".p2align 6")
    E(f".amdhsa_kernel {name}")
    E(f"  .amdhsa_next_free_vgpr {nvgpr}")
    E(f"  .amdhsa_next_free_sgpr 102")
    E(f"  .amdhsa_accum_offset {accum_offset}")
    E("  .amdhsa_group_segment_fixed_size 0")
    E("  .amdhsa_kernarg_size 80")
    E("  .amdhsa_user_sgpr_count 2")
    E("  .amdhsa_user_sgpr_kernarg_segment_ptr 1")
    E("  .amdhsa_system_sgpr_workgroup_id_x 1")
    E(".end_amdhsa_kernel")
    E(".text")

def div_const(dst, src, d, maxv, tmp_s):
    if d & (d - 1) == 0:
        E(f"    v_lshrrev_b32 v{dst}, {d.bit_length()-1}, v{src}")
        return
    sh = 20
    M = (1 << sh) // d + 1
    for x in range(maxv):
        assert (x * M) >> sh == x // d, (x, d)
    assert maxv * M < (1 << 32)
    E(f"    s_mov_b32 s{tmp_s}, {M}")
    E(f"    v_mul_lo_u32 v{dst}, v{src}, s{tmp_s}")
    E(f"    v_lshrrev_b32 v{dst}, {sh}, v{dst}")

class VM:
    def __init__(self):
        self.q = []
    def issue(self, tag, n):
        self.q.append([tag, n])
    def wait(self, tag):
        c = [i for i, (t, n) in enumerate(self.q) if t == tag]
        if not c: return
        idx = max(c)
        after = sum(n for (t, n) in self.q[idx+1:])
        E(f"    s_waitcnt vmcnt({min(after, 63)})")
        self.q = self.q[idx+1:]

def prologue(name, nwg, n_mb, n_nb, nmajor):
    E(f".globl {name}")
    E(".p2align 8")
    E(f".type {name},@function")
    E(f"{name}:")
    St.on = (STAMP == name); St.n = 0
    E(f"    s_cmp_ge_u32 s2, {nwg}")
    E(f"    s_cbranch_scc1 {name}_done")
    stamp()
    if St.on:
        E("    s_memrealtime s[88:89]")
    E("    s_load_dwordx4 s[4:7], s[0:1], 0")
    E("    s_load_dwordx4 s[8:11], s[0:1], 16")
    E("    s_load_dwordx4 s[12:15], s[0:1], 32")
    E("    s_load_dwordx4 s[16:19], s[0:1], 48")
    E("    s_load_dwordx2 s[20:21], s[0:1], 72")
    E("    s_and_b32 s22, s2, 7")
    E(f"    s_mul_i32 s22, s22, {nwg//8}")
    E("    s_lshr_b32 s23, s2, 3")
    E("    s_add_u32 s3, s22, s23")
    if nmajor:
        E(f"    s_mov_b32 s22, {(1<<32)//n_mb + 1}")
        E("    s_mul_hi_u32 s24, s3, s22")
        E(f"    s_mul_i32 s23, s24, {n_mb}")
        E("    s_sub_u32 s23, s3, s23")
    else:
        E(f"    s_mov_b32 s22, {(1<<32)//n_nb + 1}")
        E("    s_mul_hi_u32 s23, s3, s22")
        E(f"    s_mul_i32 s24, s23, {n_nb}")
        E("    s_sub_u32 s24, s3, s24")
    E("    v_and_b32 v1, 63, v0")
    E("    v_lshrrev_b32 v2, 6, v0")
    E("    v_lshrrev_b32 v7, 5, v1")
    E("    v_readfirstlane_b32 s50, v2")
    E("    s_waitcnt lgkmcnt(0)")
    E("    s_lshl_b32 s51, s50, 10")
    stamp()

def dma(voff, srd_, soff, ldsimm):
    E(f"    s_add_u32 m0, s51, {ldsimm}")
    E("    s_nop 0")
    E(f"    buffer_load_dwordx4 {voff}, {srd_}, {soff} offen lds")

def wdma_voffset(dst, RB, ldw):
    if RB == 256:
        E("    v_lshrrev_b32 v12, 4, v1")
        E("    v_lshl_add_u32 v13, v2, 2, v12")
        E(f"    s_mov_b32 s48, {ldw}")
        E("    v_mul_lo_u32 v13, v13, s48")
        E("    v_bfe_u32 v14, v1, 2, 2")
        E("    v_xor_b32 v14, v14, v12")
        E("    v_lshl_add_u32 v13, v14, 6, v13")
        E("    v_and_b32 v14, 3, v1")
        E(f"    v_lshl_add_u32 v{dst}, v14, 4, v13")
        return 32
    else:
        E("    v_lshrrev_b32 v12, 3, v1")
        E("    v_lshl_add_u32 v13, v2, 3, v12")
        E(f"    s_mov_b32 s48, {ldw}")
        E("    v_mul_lo_u32 v13, v13, s48")
        E("    v_bfe_u32 v14, v1, 2, 1")
        E("    v_bfe_u32 v15, v1, 4, 1")
        E("    v_xor_b32 v14, v14, v15")
        E("    v_lshl_add_u32 v13, v14, 6, v13")
        E("    v_and_b32 v14, 3, v1")
        E(f"    v_lshl_add_u32 v{dst}, v14, 4, v13")
        return 64

def tr_base(dst, RB, base_imm, krow_v=None):
    E("    v_bfe_u32 v8, v1, 2, 2")
    E(f"    v_lshl_add_u32 v{dst}, v7, 3, v8")
    if krow_v is not None:
        E(f"    v_lshl_add_u32 v{dst}, v{krow_v}, 4, v{dst}")
    E(f"    v_lshlrev_b32 v{dst}, {RB.bit_length()-1}, v{dst}")
    E("    v_bfe_u32 v10, v1, 4, 1")
    E(f"    v_lshl_add_u32 v{dst}, v10, 5, v{dst}")
    E("    v_and_b32 v10, 3, v1")
    E(f"    v_lshl_add_u32 v{dst}, v10, 3, v{dst}")
    E(f"    v_add_u32 v{dst}, {base_imm}, v{dst}")
    if RB == 128:
        E("    v_bfe_u32 v8, v1, 3, 1")

def xfull_dma(nrows, vm):
    npieces = nrows * 56
    n = -(-npieces // (64*NW))
    for i in range(n):
        E(f"    v_add_u32 v12, {64*NW*i}, v0")
        div_const(13, 12, 56, 64*NW*n, 48)
        E("    v_mul_u32_u24 v14, 56, v13")
        E("    v_sub_u32 v14, v12, v14")
        E("    v_bfe_u32 v15, v13, 1, 3")
        E("    v_xor_b32 v14, v14, v15")
        E("    v_mul_u32_u24 v13, 896, v13")
        E("    v_lshl_add_u32 v13, v14, 4, v13")
        E("    v_add_u32 v13, s26, v13")
        dma("v13", "s[28:31]", "0", 1024*NW*i)
    vm.issue('x', n)
    return n * 1024 * NW

def xfrag_addrs(XA, rowv):
    E(f"    v_mul_u32_u24 v9, 896, v{rowv}")
    E(f"    v_bfe_u32 v8, v{rowv}, 1, 3")
    for t in range(4):
        E(f"    v_add_u32 v10, {2*t}, v7")
        E("    v_xor_b32 v10, v10, v8")
        E(f"    v_lshl_add_u32 v{XA+t}, v10, 4, v9")

def layernorm_stats(XB, n, RS_, MR_):
    E("    s_mov_b32 s26, 0x3f803f80")
    for r in (9, 10, 11, 13):
        E(f"    v_mov_b32 v{r}, 0")
    for i in range(n):
        E(f"    v_dot2_f32_bf16 v{9 + (i&1)}, v{XB+i}, s26, v{9 + (i&1)}")
        E(f"    v_dot2_f32_bf16 v{11 if i&1 else 13}, v{XB+i}, v{XB+i}, v{11 if i&1 else 13}")
    E("    s_nop 3")
    E("    v_add_f32 v9, v9, v10")
    E("    v_add_f32 v11, v11, v13")
    E("    v_xor_b32 v12, 32, v1")
    E("    v_lshlrev_b32 v12, 2, v12")
    E("    ds_bpermute_b32 v10, v12, v9")
    E("    ds_bpermute_b32 v13, v12, v11")
    E("    s_waitcnt lgkmcnt(0)")
    E("    v_add_f32 v9, v9, v10")
    E("    v_add_f32 v11, v11, v13")
    E(f"    v_mul_f32 v9, {1.0/D!r}, v9")
    E(f"    v_mul_f32 v11, {1.0/D!r}, v11")
    E("    v_fma_f32 v11, -v9, v9, v11")
    E("    v_max_f32 v11, 0, v11")
    E(f"    v_add_f32 v11, {1e-5!r}, v11")
    E(f"    v_rsq_f32 v{RS_}, v11")
    E("    s_nop 0")
    E(f"    v_mul_f32 v{MR_}, v9, v{RS_}")

def norm_ops(XB, ks, RS_, MR_):
    ops = []
    for i in range(4*ks, 4*ks+4):
        ops.append(f"    v_lshlrev_b32 v10, 16, v{XB+i}")
        ops.append(f"    v_and_b32 v11, 0xffff0000, v{XB+i}")
        ops.append(f"    v_fma_f32 v10, v10, v{RS_}, -v{MR_}")
        ops.append(f"    v_fma_f32 v11, v11, v{RS_}, -v{MR_}")
        ops.append(f"    v_cvt_pk_bf16_f32 v{XB+i}, v10, v11")
    ops.append("    s_nop 1")
    return ops

def coop_ln(name, nrows):
    if nrows * 4 < 512:
        E(f"    s_cmp_ge_u32 s50, {nrows*4//64}")
        E(f"    s_cbranch_scc1 {name}_lnskip")
    E("    v_lshrrev_b32 v9, 2, v0")
    E("    v_and_b32 v10, 3, v0")
    E("    v_mul_u32_u24 v10, 14, v10")
    E("    v_bfe_u32 v8, v9, 1, 3")
    E("    v_mul_u32_u24 v9, 896, v9")
    for i in range(14):
        E(f"    v_add_u32 v11, {i}, v10")
        E("    v_xor_b32 v11, v11, v8")
        E(f"    v_lshl_add_u32 v{72+i}, v11, 4, v9")
        E(f"    ds_read_b128 v[{16+4*i}:{19+4*i}], v{72+i}")
    E("    s_mov_b32 s26, 0x3f803f80")
    for r in (12, 13, 14, 15):
        E(f"    v_mov_b32 v{r}, 0")
    for i in range(14):
        E(f"    s_waitcnt lgkmcnt({13-i})")
        for e in range(4):
            r = 16 + 4*i + e
            E(f"    v_dot2_f32_bf16 v{12 + (e&1)}, v{r}, s26, v{12 + (e&1)}")
            E(f"    v_dot2_f32_bf16 v{14 + (e&1)}, v{r}, v{r}, v{14 + (e&1)}")
    E("    s_nop 3")
    E("    v_add_f32 v12, v12, v13")
    E("    v_add_f32 v14, v14, v15")
    E("    s_nop 1")
    E("    v_add_f32_dpp v12, v12, v12 quad_perm:[1,0,3,2] row_mask:0xf bank_mask:0xf")
    E("    v_add_f32_dpp v14, v14, v14 quad_perm:[1,0,3,2] row_mask:0xf bank_mask:0xf")
    E("    s_nop 1")
    E("    v_add_f32_dpp v12, v12, v12 quad_perm:[2,3,0,1] row_mask:0xf bank_mask:0xf")
    E("    v_add_f32_dpp v14, v14, v14 quad_perm:[2,3,0,1] row_mask:0xf bank_mask:0xf")
    E(f"    v_mul_f32 v12, {1.0/D!r}, v12")
    E(f"    v_mul_f32 v14, {1.0/D!r}, v14")
    E("    v_fma_f32 v14, -v12, v12, v14")
    E("    v_max_f32 v14, 0, v14")
    E(f"    v_add_f32 v14, {1e-5!r}, v14")
    E("    v_rsq_f32 v15, v14")
    E("    s_nop 0")
    E("    v_mul_f32 v14, v12, v15")
    for i in range(14):
        for e in range(4):
            r = 16 + 4*i + e
            E(f"    v_lshlrev_b32 v10, 16, v{r}")
            E(f"    v_and_b32 v11, 0xffff0000, v{r}")
            E("    v_fma_f32 v10, v10, v15, -v14")
            E("    v_fma_f32 v11, v11, v15, -v14")
            E(f"    v_cvt_pk_bf16_f32 v{r}, v10, v11")
        E(f"    ds_write_b128 v{72+i}, v[{16+4*i}:{19+4*i}]")
    if nrows * 4 < 512:
        E(f"{name}_lnskip:")
    E("    s_waitcnt lgkmcnt(0)")
    E("    s_barrier")

def prefetch(pf, nwg):
    if not pf: return
    nper = nwg // 8
    E("    s_lshr_b32 s52, s2, 3")
    E("    s_and_b32 s53, s2, 7")
    for (key, kind) in pf:
        mk(56, key)
        size = PTR[key][2]
        if kind == 'all':
            lines = size // 128
            per = -(-lines // nper)
            n = -(-per // 512)
            E(f"    s_mul_i32 s54, s52, {per*128}")
            E("    v_lshlrev_b32 v9, 7, v0")
            for i in range(n):
                E(f"    s_add_u32 s55, s54, {i*512*128}")
                E("    buffer_load_dword v15, v9, s[56:59], s55 offen")
        else:
            E("    s_mul_i32 s54, s53, 28")
            E("    s_lshr_b32 s54, s54, 4")
            E("    s_lshl_b32 s54, s54, 8")
            E(f"    s_mul_i32 s55, s52, {16*3584}")
            E("    s_add_u32 s54, s54, s55")
            div_const(9, 0, 6, 512, 55)
            E("    v_mul_u32_u24 v10, 6, v9")
            E("    v_sub_u32 v10, v0, v10")
            E("    v_mul_u32_u24 v9, 3584, v9")
            E("    v_lshl_add_u32 v9, v10, 7, v9")
            E("    v_cmp_gt_u32 vcc, 96, v0")
            E("    s_and_saveexec_b64 s[92:93], vcc")
            E("    buffer_load_dword v15, v9, s[56:59], s54 offen")
            E("    s_mov_b64 exec, s[92:93]")

XB = 16
DEPTH = 6
WF = XB + 112
TMPB = WF + DEPTH*4
MFMA = "v_mfma_f32_32x32x16_bf16"

def mainloop_fullx(nchunks, ksc, R, stage, vm, units_of, ln, RS_, MR_, nfill=3, staged0=0):
    fill = []
    nxt = [staged0]
    units = []
    for c in range(nchunks):
        for uu in units_of(c):
            units.append((c,) + uu)
    n = len(units)
    def rd(u):
        c, ks, av, off, a, RB = units[u]
        r = WF + (u % DEPTH)*4
        if os.environ.get("NOREAD"): return
        E(f"    ds_read_b64_tr_b16 v[{r}:{r+1}], v{av} offset:{off}")
        E(f"    ds_read_b64_tr_b16 v[{r+2}:{r+3}], v{av} offset:{off + 4*RB}")
    for u in range(DEPTH-1):
        rd(u)
    while nxt[0] < nchunks and nxt[0] <= R - 1:
        stage(nxt[0]); nxt[0] += 1
    lastks = None
    for u in range(n):
        c, ks, av, off, a, RB = units[u]
        if ln and ks != lastks:
            while fill: E(fill.pop(0))
            if ks + 1 < 28 and not os.environ.get("NOFILL"):
                fill.extend(norm_ops(XB, ks + 1, RS_, MR_))
            lastks = ks
        if u + DEPTH - 1 < n:
            rd(u + DEPTH - 1)
            left = DEPTH - 1
        else:
            left = n - 1 - u
        E(f"    s_waitcnt lgkmcnt({2*left})")
        r = WF + (u % DEPTH)*4
        xr = XB + ks*4
        if not os.environ.get("NOMFMA"):
            E(f"    {MFMA} a[{a*16}:{a*16+15}], v[{r}:{r+3}], v[{xr}:{xr+3}], a[{a*16}:{a*16+15}]")
        for _ in range(nfill):
            if fill: E(fill.pop(0))
        if u + 1 < n and units[u+1][0] != c:
            lst = os.environ.get("LOOPST") and c in (5, 6)
            if lst: stamp()
            if c + 2 < nchunks:
                vm.wait(('w', c+2))
            if lst: stamp()
            E("    s_barrier")
            if lst: stamp()
            while nxt[0] < nchunks and nxt[0] <= c + R:
                stage(nxt[0]); nxt[0] += 1

def gen_k3():
    name = "k3_gu_kernel"
    NROWS = 128
    n_mb, n_nb = 16, 14
    nwg = n_mb * n_nb
    KC, R, RB = 32, 10, 256
    nchunks = 448 // KC
    wsrcb = KC * RB
    bufb = 2 * wsrcb
    vm = VM()
    WA, XA, WG, RS_, MR_, EW = TMPB, TMPB+6, TMPB+10, TMPB+11, TMPB+12, TMPB+13
    T = TMPB + 14
    def slot(c):
        sl = c % R
        if sl < 3: return 0, sl*bufb, 114688 + sl*bufb
        if sl < 7: return 1, (sl-3)*bufb, (sl-3)*bufb
        return 2, (sl-7)*bufb, 65536 + (sl-7)*bufb
    ACC0 = 192
    prologue(name, nwg, n_mb, n_nb, True)
    mk(28, 'h'); mk(32, 'wg'); mk(36, 'wu'); mk(40, 'act')
    E("    v_and_b32 v3, 3, v2")
    E("    v_lshrrev_b32 v4, 2, v2")
    E("    s_lshl_b32 s25, s23, 7")
    E("    s_mul_i32 s26, s25, 896")
    E("    s_lshl_b32 s27, s24, 8")
    XOFF = xfull_dma(128, vm)
    stamp()
    rpi = wdma_voffset(WG, RB, F*2)
    E(f"    v_add_u32 v{WG}, s27, v{WG}")
    LINW = os.environ.get("LINW")
    if LINW:
        E(f"    v_lshlrev_b32 v{WG}, 4, v0")
        E(f"    s_mul_i32 s27, s24, {14*8192}")
        E(f"    v_add_u32 v{WG}, s27, v{WG}")
    def stage(c):
        b = slot(c)[2]
        for si in range(2):
            E(f"    s_mov_b32 s48, {c*8192 if LINW else c*KC*F*2}")
            dma(f"v{WG}", f"s[{32+4*si}:{35+4*si}]", "s48", b + si*wsrcb)
        vm.issue(('w', c), 2)
    for c in range(3):
        stage(c)
    E("    v_and_b32 v5, 31, v1")
    E("    v_lshl_add_u32 v5, v3, 5, v5")
    tr_base(9, RB, 0)
    for j in range(2):
        E(f"    v_lshl_add_u32 v10, v4, 1, {j}")
        E("    v_xor_b32 v10, v10, v8")
        E(f"    v_lshl_add_u32 v{WA+2+j}, v10, 6, v9")
        E(f"    v_add_u32 v{WA+j}, {XOFF}, v{WA+2+j}")
        E(f"    v_add_u32 v{WA+4+j}, 65536, v{WA+2+j}")
    xfrag_addrs(XA, 5)
    for r in range(64):
        E(f"    v_accvgpr_write_b32 a{r}, 0")
    vm.wait('x')
    stamp()
    E("    s_barrier")
    coop_ln(name, NROWS)
    stamp()
    for s in range(28):
        E(f"    ds_read_b128 v[{XB+4*s}:{XB+4*s+3}], v{XA + (s&3)} offset:{128*(s>>2)}")
    E("    s_waitcnt lgkmcnt(0)")
    stamp()
    vm.wait(('w', 1))
    E("    s_barrier")
    stamp()
    def units_of(c):
        rs, b, _ = slot(c)
        return [(c*2 + s, WA + 2*rs + j, b + s*16*RB + si*wsrcb, si*2 + j, RB)
                for s in range(2) for si in range(2) for j in range(2)]
    mainloop_fullx(nchunks, 2, R, stage, vm, units_of, False, RS_, MR_, nfill=6, staged0=3)
    stamp()
    prefetch([('wd', 'all')], nwg)
    E("    s_nop 15")
    E("    s_barrier")
    RS = 144
    E(f"    v_mul_u32_u24 v{EW}, {32*RS}, v2")
    E("    v_and_b32 v11, 31, v1")
    E(f"    v_mul_u32_u24 v11, {RS}, v11")
    E(f"    v_add_u32 v{EW}, v{EW}, v11")
    E(f"    v_lshl_add_u32 v{EW}, v7, 3, v{EW}")
    for jj in range(2):
        for q in range(4):
            jg, ju = jj, 2 + jj
            TT = T + 12*(q & 1)
            for r in range(4):
                E(f"    v_accvgpr_read_b32 v{TT+r}, a{jg*16 + 4*q+r}")
            for r in range(4):
                E(f"    v_accvgpr_read_b32 v{TT+8+r}, a{ju*16 + 4*q+r}")
            for r in range(4):
                E(f"    v_mul_f32 v{TT+4+r}, 0xbfb8aa3b, v{TT+r}")
            for r in range(4):
                E(f"    v_exp_f32 v{TT+4+r}, v{TT+4+r}")
            for r in range(4):
                E(f"    v_mul_f32 v{TT+r}, v{TT+r}, v{TT+8+r}")
            for r in range(4):
                E(f"    v_add_f32 v{TT+4+r}, 1.0, v{TT+4+r}")
            for r in range(4):
                E(f"    v_rcp_f32 v{TT+4+r}, v{TT+4+r}")
            E("    s_nop 0")
            for r in range(4):
                E(f"    v_mul_f32 v{TT+r}, v{TT+r}, v{TT+4+r}")
            E(f"    v_cvt_pk_bf16_f32 v{TT+4}, v{TT}, v{TT+1}")
            E(f"    v_cvt_pk_bf16_f32 v{TT+5}, v{TT+2}, v{TT+3}")
            E(f"    ds_write_b64 v{EW}, v[{TT+4}:{TT+5}] offset:{jj*64 + q*16}")
    E("    v_lshrrev_b32 v11, 3, v1")
    E("    v_and_b32 v12, 7, v1")
    E(f"    v_mul_u32_u24 v13, {32*RS}, v2")
    E(f"    v_mul_u32_u24 v14, {RS}, v11")
    E("    v_add_u32 v13, v13, v14")
    E("    v_lshl_add_u32 v13, v12, 4, v13")
    E("    v_lshl_add_u32 v14, v3, 5, v11")
    E("    v_add_u32 v14, s25, v14")
    E(f"    s_mov_b32 s26, {F*2}")
    E("    v_mul_lo_u32 v14, v14, s26")
    E("    v_lshl_add_u32 v14, v12, 4, v14")
    E("    v_lshl_add_u32 v14, v4, 7, v14")
    E("    v_add_u32 v14, s27, v14")
    E("    s_waitcnt lgkmcnt(0)")
    for i in range(4):
        E(f"    ds_read_b128 v[{XB+4*i}:{XB+4*i+3}], v13 offset:{i*8*RS}")
    for i in range(4):
        E(f"    s_waitcnt lgkmcnt({3-i})")
        E(f"    s_mov_b32 s48, {i*8*F*2}")
        E(f"    buffer_store_dwordx4 v[{XB+4*i}:{XB+4*i+3}], v14, s[40:43], s48 offen")
    stamp_dump()
    E(f"{name}_done:")
    E("    s_endpgm")
    kernel_desc(name, ACC0 + 64, ACC0)
    return name, nwg, XOFF + 3*bufb

QS = 400
def gen_k1():
    name = "k1_qkv_kernel"
    NROWS = 96
    n_mb, n_nb = 32, 8
    nwg = n_mb * n_nb
    KC, R, RB = 64, 6, 128
    nchunks = 448 // KC
    wsrcb = KC * RB
    bufb = 3 * wsrcb
    vm = VM()
    WA, XA, WG, RS_, MR_ = TMPB, TMPB+6, TMPB+10, TMPB+11, TMPB+12
    T = TMPB + 14
    def slot(c):
        sl = c % R
        if sl < 3: return 0, sl*bufb, 90112 + sl*bufb
        return 1, (sl-3)*bufb, (sl-3)*bufb
    ACC0 = 192
    prologue(name, nwg, n_mb, n_nb, False)
    mk(28, 'x'); mk(32, 'wqkv'); mk(40, 'o')
    E("    v_add_u32 v12, 1, v2")
    E("    v_mul_u32_u24 v3, 43, v12")
    E("    v_lshrrev_b32 v3, 7, v3")
    E("    v_mul_u32_u24 v4, 3, v3")
    E("    v_sub_u32 v4, v12, v4")
    E("    s_lshl_b32 s25, s23, 6")
    E("    s_sub_i32 s25, s25, 32")
    E("    s_mul_i32 s26, s25, 896")
    E("    s_mul_i32 s27, s24, 112")
    XOFF = xfull_dma(96, vm)
    stamp()
    rpi = wdma_voffset(WG, RB, NQKV*2)
    E(f"    v_add_u32 v{WG}, s27, v{WG}")
    def stage(c):
        b = slot(c)[2]
        for si in range(3):
            E(f"    s_mov_b32 s48, {c*KC*NQKV*2 + si*896}")
            dma(f"v{WG}", "s[32:35]", "s48", b + si*wsrcb)
        vm.issue(('w', c), 3)
    for c in range(3):
        stage(c)
    E("    v_and_b32 v5, 31, v1")
    E("    v_lshl_add_u32 v5, v3, 5, v5")
    tr_base(9, RB, 0)
    E(f"    v_mul_u32_u24 v11, {wsrcb}, v4")
    E("    v_add_u32 v9, v9, v11")
    for j in range(2):
        E(f"    v_xor_b32 v10, {j}, v8")
        E(f"    v_lshl_add_u32 v{WA+2+j}, v10, 6, v9")
        E(f"    v_add_u32 v{WA+j}, {XOFF}, v{WA+2+j}")
    xfrag_addrs(XA, 5)
    for r in range(32):
        E(f"    v_accvgpr_write_b32 a{r}, 0")
    vm.wait('x')
    stamp()
    E("    s_barrier")
    coop_ln(name, NROWS)
    stamp()
    for s in range(28):
        E(f"    ds_read_b128 v[{XB+4*s}:{XB+4*s+3}], v{XA + (s&3)} offset:{128*(s>>2)}")
    E("    s_waitcnt lgkmcnt(0)")
    stamp()
    vm.wait(('w', 1))
    E("    s_barrier")
    stamp()
    def units_of(c):
        rs, b, _ = slot(c)
        return [(c*4 + s, WA + 2*rs + j, b + s*16*RB, j, RB) for s in range(4) for j in range(2)]
    mainloop_fullx(nchunks, 4, R, stage, vm, units_of, False, RS_, MR_, nfill=11, staged0=3)
    stamp()
    prefetch([('wo', 'all')], nwg)
    E("    s_nop 15")
    E("    s_barrier")
    E(f"    v_mul_u32_u24 v10, {QS}, v5")
    E("    v_lshl_add_u32 v10, v7, 3, v10")
    E("    v_lshl_add_u32 v10, v4, 7, v10")
    for j in range(2):
        for q in range(4):
            for r in range(4):
                E(f"    v_accvgpr_read_b32 v{T+r}, a{j*16 + 4*q+r}")
            E(f"    v_cvt_pk_bf16_f32 v{T+4}, v{T}, v{T+1}")
            E(f"    v_cvt_pk_bf16_f32 v{T+5}, v{T+2}, v{T+3}")
            E(f"    ds_write_b64 v10, v[{T+4}:{T+5}] offset:{j*64 + q*16}")
    E("    s_waitcnt lgkmcnt(0)")
    E("    s_barrier")
    stamp()
    E("    v_lshrrev_b32 v3, 3, v0")
    E("    v_bfe_u32 v4, v0, 2, 1")
    E("    v_mul_u32_u24 v4, 56, v4")
    E("    v_and_b32 v11, 3, v0")
    E("    v_add_u32 v5, 32, v3")
    E(f"    v_mul_u32_u24 v5, {QS}, v5")
    E("    v_add_u32 v5, v5, v4")
    for i in range(7):
        E(f"    ds_read_b64 v[{16+2*i}:{17+2*i}], v5 offset:{8*i}")
    E(f"    v_mul_u32_u24 v6, {4*QS}, v11")
    E("    v_sub_u32 v6, v5, v6")
    E(f"    v_subrev_u32 v6, {2*QS}, v6")
    KB = 64
    for w in range(2):
        for i in range(7):
            r = KB + w*14 + 2*i
            E(f"    ds_read_b64 v[{r}:{r+1}], v6 offset:{(2-2*w)*QS + 128 + 8*i}")
    VB = 96
    for w in range(2):
        for i in range(7):
            r = VB + w*14 + 2*i
            E(f"    ds_read_b64 v[{r}:{r+1}], v6 offset:{(2-2*w)*QS + 256 + 8*i}")
    E("    s_lshl_b32 s26, s23, 6")
    E("    v_add_u32 v3, s26, v3")
    E("    v_lshlrev_b32 v12, 2, v11")
    E("    v_sub_u32 v12, v3, v12")
    E("    v_mov_b32 v48, 0")
    E("    v_mov_b32 v49, 0")
    E("    s_waitcnt lgkmcnt(14)")
    for i in range(14):
        for w in range(2):
            E(f"    v_dot2_f32_bf16 v{48+w}, v{KB + w*14 + i}, v{16+i}, v{48+w}")
    E("    v_mov_b32 v8, 0xce6e6b28")
    E("    s_nop 2")
    for w in range(2):
        E(f"    v_mul_f32 v{48+w}, {28**-0.5!r}, v{48+w}")
        E(f"    v_cmp_gt_i32 vcc, {2*w}, v12")
        E("    s_nop 1")
        E(f"    v_cndmask_b32 v{48+w}, v{48+w}, v8, vcc")
    E("    v_max_f32 v56, v48, v49")
    E("    s_nop 1")
    E("    v_max_f32_dpp v56, v56, v56 quad_perm:[1,0,3,2] row_mask:0xf bank_mask:0xf")
    E("    s_nop 1")
    E("    v_max_f32_dpp v56, v56, v56 quad_perm:[2,3,0,1] row_mask:0xf bank_mask:0xf")
    for w in range(2):
        E(f"    v_sub_f32 v{48+w}, v{48+w}, v56")
        E(f"    v_mul_f32 v{48+w}, 0x3fb8aa3b, v{48+w}")
        E(f"    v_exp_f32 v{48+w}, v{48+w}")
    E("    s_nop 0")
    E("    v_add_f32 v57, v48, v49")
    E("    s_nop 1")
    E("    v_add_f32_dpp v57, v57, v57 quad_perm:[1,0,3,2] row_mask:0xf bank_mask:0xf")
    E("    s_nop 1")
    E("    v_add_f32_dpp v57, v57, v57 quad_perm:[2,3,0,1] row_mask:0xf bank_mask:0xf")
    E("    v_rcp_f32 v57, v57")
    E("    s_nop 0")
    for w in range(2):
        E(f"    v_mul_f32 v{48+w}, v{48+w}, v57")
    E("    s_waitcnt lgkmcnt(0)")
    for w in range(2):
        for i in range(14):
            r = VB + w*14 + i
            E(f"    v_lshlrev_b32 v8, 16, v{r}")
            E(f"    v_and_b32 v9, 0xffff0000, v{r}")
            if w == 0:
                E(f"    v_mul_f32 v{16+2*i}, v8, v{48+w}")
                E(f"    v_mul_f32 v{17+2*i}, v9, v{48+w}")
            else:
                E(f"    v_fmac_f32 v{16+2*i}, v8, v{48+w}")
                E(f"    v_fmac_f32 v{17+2*i}, v9, v{48+w}")
    E("    s_nop 1")
    for i in range(28):
        E(f"    v_add_f32_dpp v{16+i}, v{16+i}, v{16+i} quad_perm:[1,0,3,2] row_mask:0xf bank_mask:0xf")
    E("    s_nop 1")
    for i in range(28):
        E(f"    v_add_f32_dpp v{16+i}, v{16+i}, v{16+i} quad_perm:[2,3,0,1] row_mask:0xf bank_mask:0xf")
    for i in range(14):
        E(f"    v_cvt_pk_bf16_f32 v{64+i}, v{16+2*i}, v{17+2*i}")
    E("    v_mov_b32 v78, 0")
    E("    v_mov_b32 v79, 0")
    E(f"    v_mul_u32_u24 v5, {D*2}, v3")
    E("    v_add_u32 v5, v5, v4")
    E("    v_add_u32 v5, s27, v5")
    E("    v_lshl_add_u32 v5, v11, 4, v5")
    for k in range(1, 4):
        E(f"    v_cmp_eq_u32 vcc, {k}, v11")
        E("    s_nop 1")
        for i in range(4):
            E(f"    v_cndmask_b32 v{64+i}, v{64+i}, v{64+4*k+i}, vcc")
    E("    buffer_store_dwordx2 v[64:65], v5, s[40:43], 0 offen")
    E("    v_cmp_gt_u32 vcc, 3, v11")
    E("    s_and_saveexec_b64 s[92:93], vcc")
    E("    buffer_store_dwordx2 v[66:67], v5, s[40:43], 0 offen offset:8")
    E("    s_mov_b64 exec, s[92:93]")
    stamp_dump()
    E(f"{name}_done:")
    E("    s_endpgm")
    kernel_desc(name, ACC0 + 32, ACC0)
    return name, nwg, max(XOFF + 3*bufb, 96*QS)

def gen_ks(name, K, xsrc, x_ld, wkey, dst, res, pf):
    n_mb, n_nb = 32, 7
    nwg = n_mb * n_nb
    KC, R, RB = 64, 8, 128
    nchunks = K // KC
    R = min(R, nchunks)
    bufb = 16384
    vm = VM()
    WA, XA, WG, XG = 40, 44, 46, 47
    T = 100
    ACC0 = 128
    prologue(name, nwg, n_mb, n_nb, False)
    mk(28, xsrc); mk(32, wkey); mk(40, dst); mk(44, res)
    E("    v_and_b32 v3, 3, v2")
    E("    v_lshrrev_b32 v4, 2, v2")
    E("    s_lshl_b32 s25, s23, 6")
    E(f"    s_mul_i32 s26, s25, {x_ld}")
    E("    s_lshl_b32 s27, s24, 7")
    E("    v_lshrrev_b32 v12, 3, v1")
    E("    v_lshl_add_u32 v12, v2, 3, v12")
    E(f"    s_mov_b32 s48, {x_ld}")
    E("    v_mul_lo_u32 v12, v12, s48")
    E("    v_and_b32 v13, 1, v2")
    E("    v_lshlrev_b32 v13, 2, v13")
    E("    v_lshrrev_b32 v14, 4, v1")
    E("    v_add_u32 v13, v13, v14")
    E("    v_and_b32 v14, 7, v1")
    E("    v_xor_b32 v13, v13, v14")
    E(f"    v_lshl_add_u32 v{XG}, v13, 4, v12")
    E(f"    v_add_u32 v{XG}, s26, v{XG}")
    wdma_voffset(WG, RB, D*2)
    E(f"    v_add_u32 v{WG}, s27, v{WG}")
    def stage(c):
        b = (c % R) * bufb
        E(f"    s_mov_b32 s48, {c*KC*D*2}")
        dma(f"v{WG}", "s[32:35]", "s48", b)
        E(f"    s_mov_b32 s48, {c*KC*2}")
        dma(f"v{XG}", "s[28:31]", "s48", b + 8192)
        vm.issue(('w', c), 2)
    for c in range(R-1):
        stage(c)
    stamp()
    tr_base(9, RB, 0, krow_v=3)
    for j in range(2):
        E(f"    v_xor_b32 v10, {j}, v8")
        E(f"    v_lshl_add_u32 v{WA+j}, v10, 6, v9")
        E(f"    v_add_u32 v{WA+2+j}, 65536, v{WA+j}")
    E("    v_and_b32 v5, 31, v1")
    E("    v_lshl_add_u32 v5, v4, 5, v5")
    E("    v_lshlrev_b32 v9, 7, v5")
    E("    v_bfe_u32 v8, v5, 1, 3")
    E("    v_lshl_add_u32 v10, v3, 1, v7")
    E("    v_xor_b32 v10, v10, v8")
    E(f"    v_lshl_add_u32 v{XA}, v10, 4, v9")
    E(f"    v_add_u32 v{XA}, 8192, v{XA}")
    E(f"    v_add_u32 v{XA+1}, 65536, v{XA}")
    for r in range(32):
        E(f"    v_accvgpr_write_b32 a{r}, 0")
    vm.wait(('w', 2))
    E("    s_barrier")
    stamp()
    def rdc(c):
        hi, b = divmod((c % R) * bufb, 65536)
        rb = 16 + (c & 1) * 12
        E(f"    ds_read_b128 v[{rb}:{rb+3}], v{XA+hi} offset:{b}")
        for j in range(2):
            E(f"    ds_read_b64_tr_b16 v[{rb+4+4*j}:{rb+5+4*j}], v{WA+2*hi+j} offset:{b}")
            E(f"    ds_read_b64_tr_b16 v[{rb+6+4*j}:{rb+7+4*j}], v{WA+2*hi+j} offset:{b + 512}")
    rdc(0)
    nx = R - 1
    while nx < min(R, nchunks):
        stage(nx); nx += 1
    for c in range(nchunks):
        rb = 16 + (c & 1) * 12
        if c + 1 < nchunks:
            rdc(c + 1)
            E("    s_waitcnt lgkmcnt(7)")
        else:
            E("    s_waitcnt lgkmcnt(2)")
        E(f"    {MFMA} a[0:15], v[{rb+4}:{rb+7}], v[{rb}:{rb+3}], a[0:15]")
        E(f"    s_waitcnt lgkmcnt({5 if c + 1 < nchunks else 0})")
        E(f"    {MFMA} a[16:31], v[{rb+8}:{rb+11}], v[{rb}:{rb+3}], a[16:31]")
        if c + 1 < nchunks and (c & 1):
            vm.wait(('w', min(c+3, nchunks-1)))
            E("    s_barrier")
            while nx < nchunks and nx <= c + R:
                stage(nx); nx += 1
    stamp()
    prefetch(pf, nwg)
    E("    s_nop 15")
    E("    s_barrier")
    RS = 272
    WR = 64 * RS
    E(f"    v_mul_u32_u24 v10, {WR}, v3")
    E(f"    v_mul_u32_u24 v11, {RS}, v5")
    E("    v_add_u32 v10, v10, v11")
    E("    v_lshl_add_u32 v10, v7, 4, v10")
    for j in range(2):
        for q in range(4):
            for r in range(4):
                E(f"    v_accvgpr_read_b32 v{T+r}, a{j*16 + 4*q+r}")
            E(f"    ds_write_b128 v10, v[{T}:{T+3}] offset:{j*128 + q*32}")
    E("    v_lshrrev_b32 v11, 3, v1")
    E("    v_lshl_add_u32 v11, v2, 3, v11")
    E("    v_and_b32 v12, 7, v1")
    E(f"    v_mul_u32_u24 v13, {RS}, v11")
    E("    v_lshl_add_u32 v13, v12, 5, v13")
    E("    v_add_u32 v14, s25, v11")
    E(f"    s_mov_b32 s26, {D*2}")
    E("    v_mul_lo_u32 v14, v14, s26")
    E("    v_lshl_add_u32 v14, v12, 4, v14")
    E("    v_add_u32 v14, s27, v14")
    E("    buffer_load_dwordx4 v[80:83], v14, s[44:47], 0 offen")
    E("    s_waitcnt lgkmcnt(0)")
    E("    s_barrier")
    for w in range(4):
        E(f"    ds_read_b128 v[{48+8*w}:{51+8*w}], v13 offset:{w*WR}")
        E(f"    ds_read_b128 v[{52+8*w}:{55+8*w}], v13 offset:{w*WR + 16}")
    E("    s_waitcnt vmcnt(0) lgkmcnt(0)")
    for e in range(8):
        E(f"    v_add_f32 v{48+e}, v{48+e}, v{56+e}")
        E(f"    v_add_f32 v{64+e}, v{64+e}, v{72+e}")
        E(f"    v_add_f32 v{48+e}, v{48+e}, v{64+e}")
    for e in range(4):
        E(f"    v_lshlrev_b32 v{T}, 16, v{80+e}")
        E(f"    v_and_b32 v{T+1}, 0xffff0000, v{80+e}")
        E(f"    v_add_f32 v{T}, v{T}, v{48+2*e}")
        E(f"    v_add_f32 v{T+1}, v{T+1}, v{49+2*e}")
        E(f"    v_cvt_pk_bf16_f32 v{80+e}, v{T}, v{T+1}")
    E("    buffer_store_dwordx4 v[80:83], v14, s[40:43], 0 offen")
    stamp_dump()
    E(f"{name}_done:")
    E("    s_endpgm")
    kernel_desc(name, ACC0 + 32, ACC0)
    return name, nwg, max(R*bufb, 4*WR)

def main():
    E('.amdgcn_target "amdgcn-amd-amdhsa--gfx950"')
    E(".text")
    L = [gen_k1(),
         gen_ks("k2_wo_kernel", 448, 'o', D*2, 'wo', 'h', 'x', [('wg', 'gu'), ('wu', 'gu')]),
         gen_k3(),
         gen_ks("k4_down_kernel", 1792, 'act', F*2, 'wd', 'out', 'h', None)]
    hdr = open('sequential_preLN__sliding_local_dilated__swiglu_ffn__prompt.s.ref').read().split('\n')
    head = [l for l in hdr if l.startswith(';') and '@launch' not in l and 'Override launch' not in l and 'grid=ceil' not in l]
    for (nm, n, lds) in L:
        assert lds <= 163840, (nm, lds)
        head.append(f"; @launch kernel={nm} grid=({n},1,1) block=({64*NW},1,1) lds={lds}")
    txt = '\n'.join(head + out) + '\n'
    dst = sys.argv[1] if len(sys.argv) > 1 else 'sequential_preLN__sliding_local_dilated__swiglu_ffn__prompt.s'
    open(dst, 'w').write(txt)
    print("wrote", dst, len(txt), "bytes")

main()
```

```python
import sys, os

S_ROWS, D, F = 2048, 448, 1792
NQKV = 3 * D
WS_O = 0x600000
WS_H = 0x800000
WS_ACT = 0xA00000
NW = 8

out = []
def E(s=""):
    out.append(s)
STAMP = os.environ.get("STAMP", "")
class St:
    n = 0
    on = False
def stamp():
    if not St.on: return
    E("    s_waitcnt lgkmcnt(0)")
    E(f"    s_memtime s[{60+2*St.n}:{61+2*St.n}]")
    E("    s_waitcnt lgkmcnt(0)")
    St.n += 1
def stamp_dump():
    if not St.on: return
    E("    s_waitcnt vmcnt(0)")
    stamp()
    E("    s_load_dwordx2 s[96:97], s[0:1], 64")
    E("    s_waitcnt lgkmcnt(0)")
    E("    s_mov_b32 s98, 256")
    E("    s_mov_b32 s99, 0x00020000")
    E("    s_and_b32 s97, s97, 0xffff")
    E("    s_memrealtime s[90:91]")
    E("    s_waitcnt lgkmcnt(0)")
    E("    s_add_u32 s92, s20, 0x4000000")
    E("    s_addc_u32 s93, s21, 0")
    E("    s_and_b32 s93, s93, 0xffff")
    E("    s_mov_b32 s94, 0x10000")
    E("    s_mov_b32 s95, 0x00020000")
    E("    s_lshl_b32 s87, s2, 4")
    E("    v_mov_b32 v1, s87")
    E("    v_mov_b32 v2, s60")
    E(f"    v_mov_b32 v3, s{60+2*(St.n-1)}")
    E("    v_mov_b32 v4, s88")
    E("    v_mov_b32 v5, s90")
    E("    s_cmp_lg_u32 s50, 0")
    E("    s_cbranch_scc1 9f")
    E("    buffer_store_dwordx4 v[2:5], v1, s[92:95], 0 offen")
    E("    s_cmp_lg_u32 s2, 0")
    E("    s_cbranch_scc1 9f")
    E("    s_cmp_lg_u32 s50, 0")
    E("    s_cbranch_scc1 9f")
    E("    v_mov_b32 v1, 0")
    for i in range(St.n-1, -1, -1):
        E(f"    v_mov_b32 v2, s{60+2*i}")
        E(f"    buffer_store_dword v2, v1, s[96:99], 0 offen offset:{4*i}")
    E("9:")
    St.on = False

PTR = {'x': (4, 5, S_ROWS*D*2, None), 'wqkv': (6, 7, D*NQKV*2, None), 'wo': (8, 9, D*D*2, None),
       'wg': (12, 13, D*F*2, None), 'wu': (14, 15, D*F*2, None), 'wd': (16, 17, F*D*2, None),
       'out': (18, 19, S_ROWS*D*2, None),
       'o': (20, 21, S_ROWS*D*2, WS_O), 'h': (20, 21, S_ROWS*D*2, WS_H), 'act': (20, 21, S_ROWS*F*2, WS_ACT)}
def mk(dst, key):
    lo, hi, size, off = PTR[key]
    if off is None:
        E(f"    s_mov_b32 s{dst}, s{lo}")
        E(f"    s_and_b32 s{dst+1}, s{hi}, 0xffff")
    else:
        E(f"    s_add_u32 s{dst}, s{lo}, {off}")
        E(f"    s_addc_u32 s{dst+1}, s{hi}, 0")
        E(f"    s_and_b32 s{dst+1}, s{dst+1}, 0xffff")
    E(f"    s_mov_b32 s{dst+2}, {size}")
    E(f"    s_mov_b32 s{dst+3}, 0x00020000")

def kernel_desc(name, nvgpr, accum_offset):
    E('.section .rodata,"a"')
    E(".p2align 6")
    E(f".amdhsa_kernel {name}")
    E(f"  .amdhsa_next_free_vgpr {nvgpr}")
    E(f"  .amdhsa_next_free_sgpr 102")
    E(f"  .amdhsa_accum_offset {accum_offset}")
    E("  .amdhsa_group_segment_fixed_size 0")
    E("  .amdhsa_kernarg_size 80")
    E("  .amdhsa_user_sgpr_count 2")
    E("  .amdhsa_user_sgpr_kernarg_segment_ptr 1")
    E("  .amdhsa_system_sgpr_workgroup_id_x 1")
    E(".end_amdhsa_kernel")
    E(".text")

def div_const(dst, src, d, maxv, tmp_s):
    if d & (d - 1) == 0:
        E(f"    v_lshrrev_b32 v{dst}, {d.bit_length()-1}, v{src}")
        return
    sh = 20
    M = (1 << sh) // d + 1
    for x in range(maxv):
        assert (x * M) >> sh == x // d, (x, d)
    assert maxv * M < (1 << 32)
    E(f"    s_mov_b32 s{tmp_s}, {M}")
    E(f"    v_mul_lo_u32 v{dst}, v{src}, s{tmp_s}")
    E(f"    v_lshrrev_b32 v{dst}, {sh}, v{dst}")

class VM:
    def __init__(self):
        self.q = []
    def issue(self, tag, n):
        self.q.append([tag, n])
    def wait(self, tag):
        c = [i for i, (t, n) in enumerate(self.q) if t == tag]
        if not c: return
        idx = max(c)
        after = sum(n for (t, n) in self.q[idx+1:])
        E(f"    s_waitcnt vmcnt({min(after, 63)})")
        self.q = self.q[idx+1:]

def prologue(name, nwg, n_mb, n_nb, nmajor):
    E(f".globl {name}")
    E(".p2align 8")
    E(f".type {name},@function")
    E(f"{name}:")
    St.on = (STAMP == name); St.n = 0
    E(f"    s_cmp_ge_u32 s2, {nwg}")
    E(f"    s_cbranch_scc1 {name}_done")
    stamp()
    if St.on:
        E("    s_memrealtime s[88:89]")
    E("    s_load_dwordx4 s[4:7], s[0:1], 0")
    E("    s_load_dwordx4 s[8:11], s[0:1], 16")
    E("    s_load_dwordx4 s[12:15], s[0:1], 32")
    E("    s_load_dwordx4 s[16:19], s[0:1], 48")
    E("    s_load_dwordx2 s[20:21], s[0:1], 72")
    E("    s_and_b32 s22, s2, 7")
    E(f"    s_mul_i32 s22, s22, {nwg//8}")
    E("    s_lshr_b32 s23, s2, 3")
    E("    s_add_u32 s3, s22, s23")
    if nmajor:
        E(f"    s_mov_b32 s22, {(1<<32)//n_mb + 1}")
        E("    s_mul_hi_u32 s24, s3, s22")
        E(f"    s_mul_i32 s23, s24, {n_mb}")
        E("    s_sub_u32 s23, s3, s23")
    else:
        E(f"    s_mov_b32 s22, {(1<<32)//n_nb + 1}")
        E("    s_mul_hi_u32 s23, s3, s22")
        E(f"    s_mul_i32 s24, s23, {n_nb}")
        E("    s_sub_u32 s24, s3, s24")
    E("    v_and_b32 v1, 63, v0")
    E("    v_lshrrev_b32 v2, 6, v0")
    E("    v_lshrrev_b32 v7, 5, v1")
    E("    v_readfirstlane_b32 s50, v2")
    E("    s_waitcnt lgkmcnt(0)")
    E("    s_lshl_b32 s51, s50, 10")
    stamp()

def dma(voff, srd_, soff, ldsimm):
    E(f"    s_add_u32 m0, s51, {ldsimm}")
    E("    s_nop 0")
    E(f"    buffer_load_dwordx4 {voff}, {srd_}, {soff} offen lds")

def wdma_voffset(dst, RB, ldw):
    if RB == 256:
        E("    v_lshrrev_b32 v12, 4, v1")
        E("    v_lshl_add_u32 v13, v2, 2, v12")
        E(f"    s_mov_b32 s48, {ldw}")
        E("    v_mul_lo_u32 v13, v13, s48")
        E("    v_bfe_u32 v14, v1, 2, 2")
        E("    v_xor_b32 v14, v14, v12")
        E("    v_lshl_add_u32 v13, v14, 6, v13")
        E("    v_and_b32 v14, 3, v1")
        E(f"    v_lshl_add_u32 v{dst}, v14, 4, v13")
        return 32
    else:
        E("    v_lshrrev_b32 v12, 3, v1")
        E("    v_lshl_add_u32 v13, v2, 3, v12")
        E(f"    s_mov_b32 s48, {ldw}")
        E("    v_mul_lo_u32 v13, v13, s48")
        E("    v_bfe_u32 v14, v1, 2, 1")
        E("    v_bfe_u32 v15, v1, 4, 1")
        E("    v_xor_b32 v14, v14, v15")
        E("    v_lshl_add_u32 v13, v14, 6, v13")
        E("    v_and_b32 v14, 3, v1")
        E(f"    v_lshl_add_u32 v{dst}, v14, 4, v13")
        return 64

def tr_base(dst, RB, base_imm, krow_v=None):
    E("    v_bfe_u32 v8, v1, 2, 2")
    E(f"    v_lshl_add_u32 v{dst}, v7, 3, v8")
    if krow_v is not None:
        E(f"    v_lshl_add_u32 v{dst}, v{krow_v}, 4, v{dst}")
    E(f"    v_lshlrev_b32 v{dst}, {RB.bit_length()-1}, v{dst}")
    E("    v_bfe_u32 v10, v1, 4, 1")
    E(f"    v_lshl_add_u32 v{dst}, v10, 5, v{dst}")
    E("    v_and_b32 v10, 3, v1")
    E(f"    v_lshl_add_u32 v{dst}, v10, 3, v{dst}")
    E(f"    v_add_u32 v{dst}, {base_imm}, v{dst}")
    if RB == 128:
        E("    v_bfe_u32 v8, v1, 3, 1")

def xfull_dma(nrows, vm):
    npieces = nrows * 56
    n = -(-npieces // (64*NW))
    for i in range(n):
        E(f"    v_add_u32 v12, {64*NW*i}, v0")
        div_const(13, 12, 56, 64*NW*n, 48)
        E("    v_mul_u32_u24 v14, 56, v13")
        E("    v_sub_u32 v14, v12, v14")
        E("    v_bfe_u32 v15, v13, 1, 3")
        E("    v_xor_b32 v14, v14, v15")
        E("    v_mul_u32_u24 v13, 896, v13")
        E("    v_lshl_add_u32 v13, v14, 4, v13")
        E("    v_add_u32 v13, s26, v13")
        dma("v13", "s[28:31]", "0", 1024*NW*i)
    vm.issue('x', n)
    return n * 1024 * NW

def xfrag_addrs(XA, rowv):
    E(f"    v_mul_u32_u24 v9, 896, v{rowv}")
    E(f"    v_bfe_u32 v8, v{rowv}, 1, 3")
    for t in range(4):
        E(f"    v_add_u32 v10, {2*t}, v7")
        E("    v_xor_b32 v10, v10, v8")
        E(f"    v_lshl_add_u32 v{XA+t}, v10, 4, v9")

def layernorm_stats(XB, n, RS_, MR_):
    E("    s_mov_b32 s26, 0x3f803f80")
    for r in (9, 10, 11, 13):
        E(f"    v_mov_b32 v{r}, 0")
    for i in range(n):
        E(f"    v_dot2_f32_bf16 v{9 + (i&1)}, v{XB+i}, s26, v{9 + (i&1)}")
        E(f"    v_dot2_f32_bf16 v{11 if i&1 else 13}, v{XB+i}, v{XB+i}, v{11 if i&1 else 13}")
    E("    s_nop 3")
    E("    v_add_f32 v9, v9, v10")
    E("    v_add_f32 v11, v11, v13")
    E("    v_xor_b32 v12, 32, v1")
    E("    v_lshlrev_b32 v12, 2, v12")
    E("    ds_bpermute_b32 v10, v12, v9")
    E("    ds_bpermute_b32 v13, v12, v11")
    E("    s_waitcnt lgkmcnt(0)")
    E("    v_add_f32 v9, v9, v10")
    E("    v_add_f32 v11, v11, v13")
    E(f"    v_mul_f32 v9, {1.0/D!r}, v9")
    E(f"    v_mul_f32 v11, {1.0/D!r}, v11")
    E("    v_fma_f32 v11, -v9, v9, v11")
    E("    v_max_f32 v11, 0, v11")
    E(f"    v_add_f32 v11, {1e-5!r}, v11")
    E(f"    v_rsq_f32 v{RS_}, v11")
    E("    s_nop 0")
    E(f"    v_mul_f32 v{MR_}, v9, v{RS_}")

def norm_ops(XB, ks, RS_, MR_):
    ops = []
    for i in range(4*ks, 4*ks+4):
        ops.append(f"    v_lshlrev_b32 v10, 16, v{XB+i}")
        ops.append(f"    v_and_b32 v11, 0xffff0000, v{XB+i}")
        ops.append(f"    v_fma_f32 v10, v10, v{RS_}, -v{MR_}")
        ops.append(f"    v_fma_f32 v11, v11, v{RS_}, -v{MR_}")
        ops.append(f"    v_cvt_pk_bf16_f32 v{XB+i}, v10, v11")
    ops.append("    s_nop 1")
    return ops

def coop_ln(name, nrows):
    if nrows * 4 < 512:
        E(f"    s_cmp_ge_u32 s50, {nrows*4//64}")
        E(f"    s_cbranch_scc1 {name}_lnskip")
    E("    v_lshrrev_b32 v9, 2, v0")
    E("    v_and_b32 v10, 3, v0")
    E("    v_bfe_u32 v8, v9, 1, 3")
    E("    v_mul_u32_u24 v9, 896, v9")
    for i in range(14):
        E(f"    v_add_u32 v11, {4*i}, v10")
        E("    v_xor_b32 v11, v11, v8")
        E(f"    v_lshl_add_u32 v{72+i}, v11, 4, v9")
        E(f"    ds_read_b128 v[{16+4*i}:{19+4*i}], v{72+i}")
    E("    s_mov_b32 s26, 0x3f803f80")
    for r in (12, 13, 14, 15):
        E(f"    v_mov_b32 v{r}, 0")
    for i in range(14):
        E(f"    s_waitcnt lgkmcnt({13-i})")
        for e in range(4):
            r = 16 + 4*i + e
            E(f"    v_dot2_f32_bf16 v{12 + (e&1)}, v{r}, s26, v{12 + (e&1)}")
            E(f"    v_dot2_f32_bf16 v{14 + (e&1)}, v{r}, v{r}, v{14 + (e&1)}")
    E("    s_nop 3")
    E("    v_add_f32 v12, v12, v13")
    E("    v_add_f32 v14, v14, v15")
    E("    s_nop 1")
    E("    v_add_f32_dpp v12, v12, v12 quad_perm:[1,0,3,2] row_mask:0xf bank_mask:0xf")
    E("    v_add_f32_dpp v14, v14, v14 quad_perm:[1,0,3,2] row_mask:0xf bank_mask:0xf")
    E("    s_nop 1")
    E("    v_add_f32_dpp v12, v12, v12 quad_perm:[2,3,0,1] row_mask:0xf bank_mask:0xf")
    E("    v_add_f32_dpp v14, v14, v14 quad_perm:[2,3,0,1] row_mask:0xf bank_mask:0xf")
    E(f"    v_mul_f32 v12, {1.0/D!r}, v12")
    E(f"    v_mul_f32 v14, {1.0/D!r}, v14")
    E("    v_fma_f32 v14, -v12, v12, v14")
    E("    v_max_f32 v14, 0, v14")
    E(f"    v_add_f32 v14, {1e-5!r}, v14")
    E("    v_rsq_f32 v15, v14")
    E("    s_nop 0")
    E("    v_mul_f32 v14, v12, v15")
    E("    v_mov_b32 v88, v15")
    E("    v_mov_b32 v89, v15")
    E("    v_sub_f32 v90, 0, v14")
    E("    v_sub_f32 v91, 0, v14")
    for i in range(14):
        for e in range(4):
            r = 16 + 4*i + e
            t = 92 + 2*(e & 1)
            E(f"    v_lshlrev_b32 v{t}, 16, v{r}")
            E(f"    v_and_b32 v{t+1}, 0xffff0000, v{r}")
            E(f"    v_pk_fma_f32 v[{t}:{t+1}], v[{t}:{t+1}], v[88:89], v[90:91]")
            E(f"    v_cvt_pk_bf16_f32 v{r}, v{t}, v{t+1}")
        E(f"    ds_write_b128 v{72+i}, v[{16+4*i}:{19+4*i}]")
    if nrows * 4 < 512:
        E(f"{name}_lnskip:")
    E("    s_waitcnt lgkmcnt(0)")
    E("    s_barrier")

def prefetch(pf, nwg):
    if not pf: return
    nper = nwg // 8
    E("    s_lshr_b32 s52, s2, 3")
    E("    s_and_b32 s53, s2, 7")
    for (key, kind) in pf:
        mk(56, key)
        size = PTR[key][2]
        if kind == 'all':
            lines = size // 128
            per = -(-lines // nper)
            n = -(-per // 512)
            E(f"    s_mul_i32 s54, s52, {per*128}")
            E("    v_lshlrev_b32 v9, 7, v0")
            for i in range(n):
                E(f"    s_add_u32 s55, s54, {i*512*128}")
                E("    buffer_load_dword v15, v9, s[56:59], s55 offen")
        else:
            E("    s_mul_i32 s54, s53, 28")
            E("    s_lshr_b32 s54, s54, 4")
            E("    s_lshl_b32 s54, s54, 8")
            E(f"    s_mul_i32 s55, s52, {16*3584}")
            E("    s_add_u32 s54, s54, s55")
            div_const(9, 0, 6, 512, 55)
            E("    v_mul_u32_u24 v10, 6, v9")
            E("    v_sub_u32 v10, v0, v10")
            E("    v_mul_u32_u24 v9, 3584, v9")
            E("    v_lshl_add_u32 v9, v10, 7, v9")
            E("    v_cmp_gt_u32 vcc, 96, v0")
            E("    s_and_saveexec_b64 s[92:93], vcc")
            E("    buffer_load_dword v15, v9, s[56:59], s54 offen")
            E("    s_mov_b64 exec, s[92:93]")

XB = 16
DEPTH = 6
WF = XB + 112
TMPB = WF + DEPTH*4
MFMA = "v_mfma_f32_32x32x16_bf16"

def mainloop_fullx(nchunks, ksc, R, stage, vm, units_of, ln, RS_, MR_, nfill=3, staged0=0):
    fill = []
    nxt = [staged0]
    units = []
    for c in range(nchunks):
        for uu in units_of(c):
            units.append((c,) + uu)
    n = len(units)
    def rd(u):
        c, ks, av, off, a, RB = units[u]
        r = WF + (u % DEPTH)*4
        if os.environ.get("NOREAD"): return
        E(f"    ds_read_b64_tr_b16 v[{r}:{r+1}], v{av} offset:{off}")
        E(f"    ds_read_b64_tr_b16 v[{r+2}:{r+3}], v{av} offset:{off + 4*RB}")
    for u in range(DEPTH-1):
        rd(u)
    while nxt[0] < nchunks and nxt[0] <= R - 1:
        stage(nxt[0]); nxt[0] += 1
    lastks = None
    for u in range(n):
        c, ks, av, off, a, RB = units[u]
        if ln and ks != lastks:
            while fill: E(fill.pop(0))
            if ks + 1 < 28 and not os.environ.get("NOFILL"):
                fill.extend(norm_ops(XB, ks + 1, RS_, MR_))
            lastks = ks
        if u + DEPTH - 1 < n:
            rd(u + DEPTH - 1)
            left = DEPTH - 1
        else:
            left = n - 1 - u
        E(f"    s_waitcnt lgkmcnt({2*left})")
        r = WF + (u % DEPTH)*4
        xr = XB + ks*4
        if not os.environ.get("NOMFMA"):
            E(f"    {MFMA} a[{a*16}:{a*16+15}], v[{r}:{r+3}], v[{xr}:{xr+3}], a[{a*16}:{a*16+15}]")
        for _ in range(nfill):
            if fill: E(fill.pop(0))
        if u + 1 < n and units[u+1][0] != c:
            lst = os.environ.get("LOOPST") and c in (5, 6)
            if lst: stamp()
            if c + 2 < nchunks:
                vm.wait(('w', c+2))
            if lst: stamp()
            E("    s_barrier")
            if lst: stamp()
            while nxt[0] < nchunks and nxt[0] <= c + R:
                stage(nxt[0]); nxt[0] += 1

def gen_k3():
    name = "k3_gu_kernel"
    NROWS = 128
    n_mb, n_nb = 16, 14
    nwg = n_mb * n_nb
    KC, R, RB = 32, 10, 256
    nchunks = 448 // KC
    wsrcb = KC * RB
    bufb = 2 * wsrcb
    vm = VM()
    WA, XA, WG, RS_, MR_, EW = TMPB, TMPB+6, TMPB+10, TMPB+11, TMPB+12, TMPB+13
    T = TMPB + 14
    def slot(c):
        sl = c % R
        if sl < 3: return 0, sl*bufb, 114688 + sl*bufb
        if sl < 7: return 1, (sl-3)*bufb, (sl-3)*bufb
        return 2, (sl-7)*bufb, 65536 + (sl-7)*bufb
    ACC0 = 192
    prologue(name, nwg, n_mb, n_nb, True)
    mk(28, 'h'); mk(32, 'wg'); mk(36, 'wu'); mk(40, 'act')
    E("    v_and_b32 v3, 3, v2")
    E("    v_lshrrev_b32 v4, 2, v2")
    E("    s_lshl_b32 s25, s23, 7")
    E("    s_mul_i32 s26, s25, 896")
    E("    s_lshl_b32 s27, s24, 8")
    XOFF = xfull_dma(128, vm)
    stamp()
    rpi = wdma_voffset(WG, RB, F*2)
    E(f"    v_add_u32 v{WG}, s27, v{WG}")
    LINW = os.environ.get("LINW")
    if LINW:
        E(f"    v_lshlrev_b32 v{WG}, 4, v0")
        E(f"    s_mul_i32 s27, s24, {14*8192}")
        E(f"    v_add_u32 v{WG}, s27, v{WG}")
    def stage(c):
        b = slot(c)[2]
        for si in range(2):
            E(f"    s_mov_b32 s48, {c*8192 if LINW else c*KC*F*2}")
            dma(f"v{WG}", f"s[{32+4*si}:{35+4*si}]", "s48", b + si*wsrcb)
        vm.issue(('w', c), 2)
    for c in range(3):
        stage(c)
    E("    v_and_b32 v5, 31, v1")
    E("    v_lshl_add_u32 v5, v3, 5, v5")
    tr_base(9, RB, 0)
    for j in range(2):
        E(f"    v_lshl_add_u32 v10, v4, 1, {j}")
        E("    v_xor_b32 v10, v10, v8")
        E(f"    v_lshl_add_u32 v{WA+2+j}, v10, 6, v9")
        E(f"    v_add_u32 v{WA+j}, {XOFF}, v{WA+2+j}")
        E(f"    v_add_u32 v{WA+4+j}, 65536, v{WA+2+j}")
    xfrag_addrs(XA, 5)
    for r in range(64):
        E(f"    v_accvgpr_write_b32 a{r}, 0")
    vm.wait('x')
    stamp()
    E("    s_barrier")
    if os.environ.get("LN2X"):
        E("    s_mov_b32 s86, 0")
        E(f"{name}_ln2x:")
        stamp()
    coop_ln(name, NROWS)
    if os.environ.get("LN2X"):
        E("    s_add_u32 s86, s86, 1")
        E("    s_cmp_lt_u32 s86, 2")
        E(f"    s_cbranch_scc1 {name}_ln2x")
    stamp()
    for s in range(28):
        E(f"    ds_read_b128 v[{XB+4*s}:{XB+4*s+3}], v{XA + (s&3)} offset:{128*(s>>2)}")
    E("    s_waitcnt lgkmcnt(0)")
    stamp()
    vm.wait(('w', 1))
    E("    s_barrier")
    stamp()
    def units_of(c):
        rs, b, _ = slot(c)
        return [(c*2 + s, WA + 2*rs + j, b + s*16*RB + si*wsrcb, si*2 + j, RB)
                for s in range(2) for si in range(2) for j in range(2)]
    mainloop_fullx(nchunks, 2, R, stage, vm, units_of, False, RS_, MR_, nfill=6, staged0=3)
    stamp()
    prefetch([('wd', 'all')], nwg)
    E("    s_nop 15")
    E("    s_barrier")
    RS = 144
    E(f"    v_mul_u32_u24 v{EW}, {32*RS}, v2")
    E("    v_and_b32 v11, 31, v1")
    E(f"    v_mul_u32_u24 v11, {RS}, v11")
    E(f"    v_add_u32 v{EW}, v{EW}, v11")
    E(f"    v_lshl_add_u32 v{EW}, v7, 3, v{EW}")
    for jj in range(2):
        for q in range(4):
            jg, ju = jj, 2 + jj
            TT = T + 12*(q & 1)
            for r in range(4):
                E(f"    v_accvgpr_read_b32 v{TT+r}, a{jg*16 + 4*q+r}")
            for r in range(4):
                E(f"    v_accvgpr_read_b32 v{TT+8+r}, a{ju*16 + 4*q+r}")
            for r in range(4):
                E(f"    v_mul_f32 v{TT+4+r}, 0xbfb8aa3b, v{TT+r}")
            for r in range(4):
                E(f"    v_exp_f32 v{TT+4+r}, v{TT+4+r}")
            for r in range(4):
                E(f"    v_mul_f32 v{TT+r}, v{TT+r}, v{TT+8+r}")
            for r in range(4):
                E(f"    v_add_f32 v{TT+4+r}, 1.0, v{TT+4+r}")
            for r in range(4):
                E(f"    v_rcp_f32 v{TT+4+r}, v{TT+4+r}")
            E("    s_nop 0")
            for r in range(4):
                E(f"    v_mul_f32 v{TT+r}, v{TT+r}, v{TT+4+r}")
            E(f"    v_cvt_pk_bf16_f32 v{TT+4}, v{TT}, v{TT+1}")
            E(f"    v_cvt_pk_bf16_f32 v{TT+5}, v{TT+2}, v{TT+3}")
            E(f"    ds_write_b64 v{EW}, v[{TT+4}:{TT+5}] offset:{jj*64 + q*16}")
    E("    v_lshrrev_b32 v11, 3, v1")
    E("    v_and_b32 v12, 7, v1")
    E(f"    v_mul_u32_u24 v13, {32*RS}, v2")
    E(f"    v_mul_u32_u24 v14, {RS}, v11")
    E("    v_add_u32 v13, v13, v14")
    E("    v_lshl_add_u32 v13, v12, 4, v13")
    E("    v_lshl_add_u32 v14, v3, 5, v11")
    E("    v_add_u32 v14, s25, v14")
    E(f"    s_mov_b32 s26, {F*2}")
    E("    v_mul_lo_u32 v14, v14, s26")
    E("    v_lshl_add_u32 v14, v12, 4, v14")
    E("    v_lshl_add_u32 v14, v4, 7, v14")
    E("    v_add_u32 v14, s27, v14")
    E("    s_waitcnt lgkmcnt(0)")
    for i in range(4):
        E(f"    ds_read_b128 v[{XB+4*i}:{XB+4*i+3}], v13 offset:{i*8*RS}")
    for i in range(4):
        E(f"    s_waitcnt lgkmcnt({3-i})")
        E(f"    s_mov_b32 s48, {i*8*F*2}")
        E(f"    buffer_store_dwordx4 v[{XB+4*i}:{XB+4*i+3}], v14, s[40:43], s48 offen")
    stamp_dump()
    E(f"{name}_done:")
    E("    s_endpgm")
    kernel_desc(name, ACC0 + 64, ACC0)
    return name, nwg, XOFF + 3*bufb

QS = 400
def gen_k1():
    name = "k1_qkv_kernel"
    NROWS = 96
    n_mb, n_nb = 32, 8
    nwg = n_mb * n_nb
    KC, R, RB = 64, 6, 128
    nchunks = 448 // KC
    wsrcb = KC * RB
    bufb = 3 * wsrcb
    vm = VM()
    WA, XA, WG, RS_, MR_ = TMPB, TMPB+6, TMPB+10, TMPB+11, TMPB+12
    T = TMPB + 14
    def slot(c):
        sl = c % R
        if sl < 3: return 0, sl*bufb, 90112 + sl*bufb
        return 1, (sl-3)*bufb, (sl-3)*bufb
    ACC0 = 192
    prologue(name, nwg, n_mb, n_nb, False)
    mk(28, 'x'); mk(32, 'wqkv'); mk(40, 'o')
    E("    v_add_u32 v12, 1, v2")
    E("    v_mul_u32_u24 v3, 43, v12")
    E("    v_lshrrev_b32 v3, 7, v3")
    E("    v_mul_u32_u24 v4, 3, v3")
    E("    v_sub_u32 v4, v12, v4")
    E("    s_lshl_b32 s25, s23, 6")
    E("    s_sub_i32 s25, s25, 32")
    E("    s_mul_i32 s26, s25, 896")
    E("    s_mul_i32 s27, s24, 112")
    XOFF = xfull_dma(96, vm)
    stamp()
    rpi = wdma_voffset(WG, RB, NQKV*2)
    E(f"    v_add_u32 v{WG}, s27, v{WG}")
    def stage(c):
        b = slot(c)[2]
        for si in range(3):
            E(f"    s_mov_b32 s48, {c*KC*NQKV*2 + si*896}")
            dma(f"v{WG}", "s[32:35]", "s48", b + si*wsrcb)
        vm.issue(('w', c), 3)
    for c in range(3):
        stage(c)
    E("    v_and_b32 v5, 31, v1")
    E("    v_lshl_add_u32 v5, v3, 5, v5")
    tr_base(9, RB, 0)
    E(f"    v_mul_u32_u24 v11, {wsrcb}, v4")
    E("    v_add_u32 v9, v9, v11")
    for j in range(2):
        E(f"    v_xor_b32 v10, {j}, v8")
        E(f"    v_lshl_add_u32 v{WA+2+j}, v10, 6, v9")
        E(f"    v_add_u32 v{WA+j}, {XOFF}, v{WA+2+j}")
    xfrag_addrs(XA, 5)
    for r in range(32):
        E(f"    v_accvgpr_write_b32 a{r}, 0")
    vm.wait('x')
    stamp()
    E("    s_barrier")
    if os.environ.get("LN2X"):
        E("    s_mov_b32 s86, 0")
        E(f"{name}_ln2x:")
        stamp()
    coop_ln(name, NROWS)
    if os.environ.get("LN2X"):
        E("    s_add_u32 s86, s86, 1")
        E("    s_cmp_lt_u32 s86, 2")
        E(f"    s_cbranch_scc1 {name}_ln2x")
    stamp()
    for s in range(28):
        E(f"    ds_read_b128 v[{XB+4*s}:{XB+4*s+3}], v{XA + (s&3)} offset:{128*(s>>2)}")
    E("    s_waitcnt lgkmcnt(0)")
    stamp()
    vm.wait(('w', 1))
    E("    s_barrier")
    stamp()
    def units_of(c):
        rs, b, _ = slot(c)
        return [(c*4 + s, WA + 2*rs + j, b + s*16*RB, j, RB) for s in range(4) for j in range(2)]
    mainloop_fullx(nchunks, 4, R, stage, vm, units_of, False, RS_, MR_, nfill=11, staged0=3)
    stamp()
    prefetch([('wo', 'all')], nwg)
    E("    s_nop 15")
    E("    s_barrier")
    E(f"    v_mul_u32_u24 v10, {QS}, v5")
    E("    v_lshl_add_u32 v10, v7, 3, v10")
    E("    v_lshl_add_u32 v10, v4, 7, v10")
    for j in range(2):
        for q in range(4):
            for r in range(4):
                E(f"    v_accvgpr_read_b32 v{T+r}, a{j*16 + 4*q+r}")
            E(f"    v_cvt_pk_bf16_f32 v{T+4}, v{T}, v{T+1}")
            E(f"    v_cvt_pk_bf16_f32 v{T+5}, v{T+2}, v{T+3}")
            E(f"    ds_write_b64 v10, v[{T+4}:{T+5}] offset:{j*64 + q*16}")
    E("    s_waitcnt lgkmcnt(0)")
    E("    s_barrier")
    stamp()
    E("    v_lshrrev_b32 v3, 3, v0")
    E("    v_bfe_u32 v4, v0, 2, 1")
    E("    v_mul_u32_u24 v4, 56, v4")
    E("    v_and_b32 v11, 3, v0")
    E("    v_add_u32 v5, 32, v3")
    E(f"    v_mul_u32_u24 v5, {QS}, v5")
    E("    v_add_u32 v5, v5, v4")
    for i in range(7):
        E(f"    ds_read_b64 v[{16+2*i}:{17+2*i}], v5 offset:{8*i}")
    E(f"    v_mul_u32_u24 v6, {4*QS}, v11")
    E("    v_sub_u32 v6, v5, v6")
    E(f"    v_subrev_u32 v6, {2*QS}, v6")
    KB = 64
    for w in range(2):
        for i in range(7):
            r = KB + w*14 + 2*i
            E(f"    ds_read_b64 v[{r}:{r+1}], v6 offset:{(2-2*w)*QS + 128 + 8*i}")
    VB = 96
    for w in range(2):
        for i in range(7):
            r = VB + w*14 + 2*i
            E(f"    ds_read_b64 v[{r}:{r+1}], v6 offset:{(2-2*w)*QS + 256 + 8*i}")
    E("    s_lshl_b32 s26, s23, 6")
    E("    v_add_u32 v3, s26, v3")
    E("    v_lshlrev_b32 v12, 2, v11")
    E("    v_sub_u32 v12, v3, v12")
    E("    v_mov_b32 v48, 0")
    E("    v_mov_b32 v49, 0")
    E("    s_waitcnt lgkmcnt(14)")
    for i in range(14):
        for w in range(2):
            E(f"    v_dot2_f32_bf16 v{48+w}, v{KB + w*14 + i}, v{16+i}, v{48+w}")
    E("    v_mov_b32 v8, 0xce6e6b28")
    E("    s_nop 2")
    for w in range(2):
        E(f"    v_mul_f32 v{48+w}, {28**-0.5!r}, v{48+w}")
        E(f"    v_cmp_gt_i32 vcc, {2*w}, v12")
        E("    s_nop 1")
        E(f"    v_cndmask_b32 v{48+w}, v{48+w}, v8, vcc")
    E("    v_max_f32 v56, v48, v49")
    E("    s_nop 1")
    E("    v_max_f32_dpp v56, v56, v56 quad_perm:[1,0,3,2] row_mask:0xf bank_mask:0xf")
    E("    s_nop 1")
    E("    v_max_f32_dpp v56, v56, v56 quad_perm:[2,3,0,1] row_mask:0xf bank_mask:0xf")
    for w in range(2):
        E(f"    v_sub_f32 v{48+w}, v{48+w}, v56")
        E(f"    v_mul_f32 v{48+w}, 0x3fb8aa3b, v{48+w}")
        E(f"    v_exp_f32 v{48+w}, v{48+w}")
    E("    s_nop 0")
    E("    v_add_f32 v57, v48, v49")
    E("    s_nop 1")
    E("    v_add_f32_dpp v57, v57, v57 quad_perm:[1,0,3,2] row_mask:0xf bank_mask:0xf")
    E("    s_nop 1")
    E("    v_add_f32_dpp v57, v57, v57 quad_perm:[2,3,0,1] row_mask:0xf bank_mask:0xf")
    E("    v_rcp_f32 v57, v57")
    E("    s_nop 0")
    for w in range(2):
        E(f"    v_mul_f32 v{48+w}, v{48+w}, v57")
    E("    s_waitcnt lgkmcnt(0)")
    for w in range(2):
        for i in range(14):
            r = VB + w*14 + i
            E(f"    v_lshlrev_b32 v8, 16, v{r}")
            E(f"    v_and_b32 v9, 0xffff0000, v{r}")
            if w == 0:
                E(f"    v_mul_f32 v{16+2*i}, v8, v{48+w}")
                E(f"    v_mul_f32 v{17+2*i}, v9, v{48+w}")
            else:
                E(f"    v_fmac_f32 v{16+2*i}, v8, v{48+w}")
                E(f"    v_fmac_f32 v{17+2*i}, v9, v{48+w}")
    E("    s_nop 1")
    for i in range(28):
        E(f"    v_add_f32_dpp v{16+i}, v{16+i}, v{16+i} quad_perm:[1,0,3,2] row_mask:0xf bank_mask:0xf")
    E("    s_nop 1")
    for i in range(28):
        E(f"    v_add_f32_dpp v{16+i}, v{16+i}, v{16+i} quad_perm:[2,3,0,1] row_mask:0xf bank_mask:0xf")
    for i in range(14):
        E(f"    v_cvt_pk_bf16_f32 v{64+i}, v{16+2*i}, v{17+2*i}")
    E("    v_mov_b32 v78, 0")
    E("    v_mov_b32 v79, 0")
    E(f"    v_mul_u32_u24 v5, {D*2}, v3")
    E("    v_add_u32 v5, v5, v4")
    E("    v_add_u32 v5, s27, v5")
    E("    v_lshl_add_u32 v5, v11, 4, v5")
    for k in range(1, 4):
        E(f"    v_cmp_eq_u32 vcc, {k}, v11")
        E("    s_nop 1")
        for i in range(4):
            E(f"    v_cndmask_b32 v{64+i}, v{64+i}, v{64+4*k+i}, vcc")
    E("    buffer_store_dwordx2 v[64:65], v5, s[40:43], 0 offen")
    E("    v_cmp_gt_u32 vcc, 3, v11")
    E("    s_and_saveexec_b64 s[92:93], vcc")
    E("    buffer_store_dwordx2 v[66:67], v5, s[40:43], 0 offen offset:8")
    E("    s_mov_b64 exec, s[92:93]")
    stamp_dump()
    E(f"{name}_done:")
    E("    s_endpgm")
    kernel_desc(name, ACC0 + 32, ACC0)
    return name, nwg, max(XOFF + 3*bufb, 96*QS)

def gen_ks(name, K, xsrc, x_ld, wkey, dst, res, pf):
    n_mb, n_nb = 32, 7
    nwg = n_mb * n_nb
    KC, R, RB = 64, 8, 128
    nchunks = K // KC
    R = min(R, nchunks)
    bufb = 16384
    vm = VM()
    WA, XA, WG, XG = 40, 44, 46, 47
    T = 100
    ACC0 = 128
    prologue(name, nwg, n_mb, n_nb, False)
    mk(28, xsrc); mk(32, wkey); mk(40, dst); mk(44, res)
    E("    v_and_b32 v3, 3, v2")
    E("    v_lshrrev_b32 v4, 2, v2")
    E("    s_lshl_b32 s25, s23, 6")
    E(f"    s_mul_i32 s26, s25, {x_ld}")
    E("    s_lshl_b32 s27, s24, 7")
    E("    v_lshrrev_b32 v12, 3, v1")
    E("    v_lshl_add_u32 v12, v2, 3, v12")
    E(f"    s_mov_b32 s48, {x_ld}")
    E("    v_mul_lo_u32 v12, v12, s48")
    E("    v_and_b32 v13, 1, v2")
    E("    v_lshlrev_b32 v13, 2, v13")
    E("    v_lshrrev_b32 v14, 4, v1")
    E("    v_add_u32 v13, v13, v14")
    E("    v_and_b32 v14, 7, v1")
    E("    v_xor_b32 v13, v13, v14")
    E(f"    v_lshl_add_u32 v{XG}, v13, 4, v12")
    E(f"    v_add_u32 v{XG}, s26, v{XG}")
    wdma_voffset(WG, RB, D*2)
    E(f"    v_add_u32 v{WG}, s27, v{WG}")
    def stage(c):
        b = (c % R) * bufb
        E(f"    s_mov_b32 s48, {c*KC*D*2}")
        dma(f"v{WG}", "s[32:35]", "s48", b)
        E(f"    s_mov_b32 s48, {c*KC*2}")
        dma(f"v{XG}", "s[28:31]", "s48", b + 8192)
        vm.issue(('w', c), 2)
    for c in range(R-1):
        stage(c)
    stamp()
    tr_base(9, RB, 0, krow_v=3)
    for j in range(2):
        E(f"    v_xor_b32 v10, {j}, v8")
        E(f"    v_lshl_add_u32 v{WA+j}, v10, 6, v9")
        E(f"    v_add_u32 v{WA+2+j}, 65536, v{WA+j}")
    E("    v_and_b32 v5, 31, v1")
    E("    v_lshl_add_u32 v5, v4, 5, v5")
    E("    v_lshlrev_b32 v9, 7, v5")
    E("    v_bfe_u32 v8, v5, 1, 3")
    E("    v_lshl_add_u32 v10, v3, 1, v7")
    E("    v_xor_b32 v10, v10, v8")
    E(f"    v_lshl_add_u32 v{XA}, v10, 4, v9")
    E(f"    v_add_u32 v{XA}, 8192, v{XA}")
    E(f"    v_add_u32 v{XA+1}, 65536, v{XA}")
    for r in range(32):
        E(f"    v_accvgpr_write_b32 a{r}, 0")
    vm.wait(('w', 2))
    E("    s_barrier")
    stamp()
    def rdc(c):
        hi, b = divmod((c % R) * bufb, 65536)
        rb = 16 + (c & 1) * 12
        E(f"    ds_read_b128 v[{rb}:{rb+3}], v{XA+hi} offset:{b}")
        for j in range(2):
            E(f"    ds_read_b64_tr_b16 v[{rb+4+4*j}:{rb+5+4*j}], v{WA+2*hi+j} offset:{b}")
            E(f"    ds_read_b64_tr_b16 v[{rb+6+4*j}:{rb+7+4*j}], v{WA+2*hi+j} offset:{b + 512}")
    rdc(0)
    nx = R - 1
    while nx < min(R, nchunks):
        stage(nx); nx += 1
    for c in range(nchunks):
        rb = 16 + (c & 1) * 12
        if c + 1 < nchunks:
            rdc(c + 1)
            E("    s_waitcnt lgkmcnt(7)")
        else:
            E("    s_waitcnt lgkmcnt(2)")
        E(f"    {MFMA} a[0:15], v[{rb+4}:{rb+7}], v[{rb}:{rb+3}], a[0:15]")
        E(f"    s_waitcnt lgkmcnt({5 if c + 1 < nchunks else 0})")
        E(f"    {MFMA} a[16:31], v[{rb+8}:{rb+11}], v[{rb}:{rb+3}], a[16:31]")
        if c + 1 < nchunks and (c & 1):
            vm.wait(('w', min(c+3, nchunks-1)))
            E("    s_barrier")
            while nx < nchunks and nx <= c + R:
                stage(nx); nx += 1
    stamp()
    prefetch(pf, nwg)
    E("    s_nop 15")
    E("    s_barrier")
    RS = 272
    WR = 64 * RS
    E(f"    v_mul_u32_u24 v10, {WR}, v3")
    E(f"    v_mul_u32_u24 v11, {RS}, v5")
    E("    v_add_u32 v10, v10, v11")
    E("    v_lshl_add_u32 v10, v7, 4, v10")
    for j in range(2):
        for q in range(4):
            for r in range(4):
                E(f"    v_accvgpr_read_b32 v{T+r}, a{j*16 + 4*q+r}")
            E(f"    ds_write_b128 v10, v[{T}:{T+3}] offset:{j*128 + q*32}")
    E("    v_lshrrev_b32 v11, 3, v1")
    E("    v_lshl_add_u32 v11, v2, 3, v11")
    E("    v_and_b32 v12, 7, v1")
    E(f"    v_mul_u32_u24 v13, {RS}, v11")
    E("    v_lshl_add_u32 v13, v12, 5, v13")
    E("    v_add_u32 v14, s25, v11")
    E(f"    s_mov_b32 s26, {D*2}")
    E("    v_mul_lo_u32 v14, v14, s26")
    E("    v_lshl_add_u32 v14, v12, 4, v14")
    E("    v_add_u32 v14, s27, v14")
    E("    buffer_load_dwordx4 v[80:83], v14, s[44:47], 0 offen")
    E("    s_waitcnt lgkmcnt(0)")
    E("    s_barrier")
    for w in range(4):
        E(f"    ds_read_b128 v[{48+8*w}:{51+8*w}], v13 offset:{w*WR}")
        E(f"    ds_read_b128 v[{52+8*w}:{55+8*w}], v13 offset:{w*WR + 16}")
    E("    s_waitcnt vmcnt(0) lgkmcnt(0)")
    for e in range(8):
        E(f"    v_add_f32 v{48+e}, v{48+e}, v{56+e}")
        E(f"    v_add_f32 v{64+e}, v{64+e}, v{72+e}")
        E(f"    v_add_f32 v{48+e}, v{48+e}, v{64+e}")
    for e in range(4):
        E(f"    v_lshlrev_b32 v{T}, 16, v{80+e}")
        E(f"    v_and_b32 v{T+1}, 0xffff0000, v{80+e}")
        E(f"    v_add_f32 v{T}, v{T}, v{48+2*e}")
        E(f"    v_add_f32 v{T+1}, v{T+1}, v{49+2*e}")
        E(f"    v_cvt_pk_bf16_f32 v{80+e}, v{T}, v{T+1}")
    E("    buffer_store_dwordx4 v[80:83], v14, s[40:43], 0 offen")
    stamp_dump()
    E(f"{name}_done:")
    E("    s_endpgm")
    kernel_desc(name, ACC0 + 32, ACC0)
    return name, nwg, max(R*bufb, 4*WR)

def main():
    E('.amdgcn_target "amdgcn-amd-amdhsa--gfx950"')
    E(".text")
    L = [gen_k1(),
         gen_ks("k2_wo_kernel", 448, 'o', D*2, 'wo', 'h', 'x', [('wg', 'gu'), ('wu', 'gu')]),
         gen_k3(),
         gen_ks("k4_down_kernel", 1792, 'act', F*2, 'wd', 'out', 'h', None)]
    hdr = open('sequential_preLN__sliding_local_dilated__swiglu_ffn__prompt.s.ref').read().split('\n')
    head = [l for l in hdr if l.startswith(';') and '@launch' not in l and 'Override launch' not in l and 'grid=ceil' not in l]
    for (nm, n, lds) in L:
        assert lds <= 163840, (nm, lds)
        head.append(f"; @launch kernel={nm} grid=({n},1,1) block=({64*NW},1,1) lds={lds}")
    txt = '\n'.join(head + out) + '\n'
    dst = sys.argv[1] if len(sys.argv) > 1 else 'sequential_preLN__sliding_local_dilated__swiglu_ffn__prompt.s'
    open(dst, 'w').write(txt)
    print("wrote", dst, len(txt), "bytes")

main()
```

```python
import sys, os

S_ROWS, D, F = 2048, 448, 1792
NQKV = 3 * D
WS_O = 0x600000
WS_H = 0x800000
WS_ACT = 0xA00000
NW = 8

out = []
def E(s=""):
    out.append(s)
STAMP = os.environ.get("STAMP", "")
class St:
    n = 0
    on = False
def stamp():
    if not St.on: return
    E("    s_waitcnt lgkmcnt(0)")
    E(f"    s_memtime s[{60+2*St.n}:{61+2*St.n}]")
    E("    s_waitcnt lgkmcnt(0)")
    St.n += 1
def stamp_dump():
    if not St.on: return
    E("    s_waitcnt vmcnt(0)")
    stamp()
    E("    s_load_dwordx2 s[96:97], s[0:1], 64")
    E("    s_waitcnt lgkmcnt(0)")
    E("    s_mov_b32 s98, 256")
    E("    s_mov_b32 s99, 0x00020000")
    E("    s_and_b32 s97, s97, 0xffff")
    E("    s_memrealtime s[90:91]")
    E("    s_waitcnt lgkmcnt(0)")
    E("    s_add_u32 s92, s20, 0x4000000")
    E("    s_addc_u32 s93, s21, 0")
    E("    s_and_b32 s93, s93, 0xffff")
    E("    s_mov_b32 s94, 0x10000")
    E("    s_mov_b32 s95, 0x00020000")
    E("    s_lshl_b32 s87, s2, 4")
    E("    v_mov_b32 v1, s87")
    E("    v_mov_b32 v2, s60")
    E(f"    v_mov_b32 v3, s{60+2*(St.n-1)}")
    E("    v_mov_b32 v4, s88")
    E("    v_mov_b32 v5, s90")
    E("    s_cmp_lg_u32 s50, 0")
    E("    s_cbranch_scc1 9f")
    E("    buffer_store_dwordx4 v[2:5], v1, s[92:95], 0 offen")
    E("    s_cmp_lg_u32 s2, 0")
    E("    s_cbranch_scc1 9f")
    E("    s_cmp_lg_u32 s50, 0")
    E("    s_cbranch_scc1 9f")
    E("    v_mov_b32 v1, 0")
    for i in range(St.n-1, -1, -1):
        E(f"    v_mov_b32 v2, s{60+2*i}")
        E(f"    buffer_store_dword v2, v1, s[96:99], 0 offen offset:{4*i}")
    E("9:")
    St.on = False

PTR = {'x': (4, 5, S_ROWS*D*2, None), 'wqkv': (6, 7, D*NQKV*2, None), 'wo': (8, 9, D*D*2, None),
       'wg': (12, 13, D*F*2, None), 'wu': (14, 15, D*F*2, None), 'wd': (16, 17, F*D*2, None),
       'out': (18, 19, S_ROWS*D*2, None),
       'o': (20, 21, S_ROWS*D*2, WS_O), 'h': (20, 21, S_ROWS*D*2, WS_H), 'act': (20, 21, S_ROWS*F*2, WS_ACT)}
def mk(dst, key):
    lo, hi, size, off = PTR[key]
    if off is None:
        E(f"    s_mov_b32 s{dst}, s{lo}")
        E(f"    s_and_b32 s{dst+1}, s{hi}, 0xffff")
    else:
        E(f"    s_add_u32 s{dst}, s{lo}, {off}")
        E(f"    s_addc_u32 s{dst+1}, s{hi}, 0")
        E(f"    s_and_b32 s{dst+1}, s{dst+1}, 0xffff")
    E(f"    s_mov_b32 s{dst+2}, {size}")
    E(f"    s_mov_b32 s{dst+3}, 0x00020000")

def kernel_desc(name, nvgpr, accum_offset):
    E('.section .rodata,"a"')
    E(".p2align 6")
    E(f".amdhsa_kernel {name}")
    E(f"  .amdhsa_next_free_vgpr {nvgpr}")
    E(f"  .amdhsa_next_free_sgpr 102")
    E(f"  .amdhsa_accum_offset {accum_offset}")
    E("  .amdhsa_group_segment_fixed_size 0")
    E("  .amdhsa_kernarg_size 80")
    E("  .amdhsa_user_sgpr_count 2")
    E("  .amdhsa_user_sgpr_kernarg_segment_ptr 1")
    E("  .amdhsa_system_sgpr_workgroup_id_x 1")
    E(".end_amdhsa_kernel")
    E(".text")

def div_const(dst, src, d, maxv, tmp_s):
    if d & (d - 1) == 0:
        E(f"    v_lshrrev_b32 v{dst}, {d.bit_length()-1}, v{src}")
        return
    sh = 20
    M = (1 << sh) // d + 1
    for x in range(maxv):
        assert (x * M) >> sh == x // d, (x, d)
    assert maxv * M < (1 << 32)
    E(f"    s_mov_b32 s{tmp_s}, {M}")
    E(f"    v_mul_lo_u32 v{dst}, v{src}, s{tmp_s}")
    E(f"    v_lshrrev_b32 v{dst}, {sh}, v{dst}")

class VM:
    def __init__(self):
        self.q = []
    def issue(self, tag, n):
        self.q.append([tag, n])
    def wait(self, tag):
        c = [i for i, (t, n) in enumerate(self.q) if t == tag]
        if not c: return
        idx = max(c)
        after = sum(n for (t, n) in self.q[idx+1:])
        E(f"    s_waitcnt vmcnt({min(after, 63)})")
        self.q = self.q[idx+1:]

def prologue(name, nwg, n_mb, n_nb, nmajor):
    E(f".globl {name}")
    E(".p2align 8")
    E(f".type {name},@function")
    E(f"{name}:")
    St.on = (STAMP == name); St.n = 0
    E(f"    s_cmp_ge_u32 s2, {nwg}")
    E(f"    s_cbranch_scc1 {name}_done")
    stamp()
    if St.on:
        E("    s_memrealtime s[88:89]")
    E("    s_load_dwordx4 s[4:7], s[0:1], 0")
    E("    s_load_dwordx4 s[8:11], s[0:1], 16")
    E("    s_load_dwordx4 s[12:15], s[0:1], 32")
    E("    s_load_dwordx4 s[16:19], s[0:1], 48")
    E("    s_load_dwordx2 s[20:21], s[0:1], 72")
    E("    s_and_b32 s22, s2, 7")
    E(f"    s_mul_i32 s22, s22, {nwg//8}")
    E("    s_lshr_b32 s23, s2, 3")
    E("    s_add_u32 s3, s22, s23")
    if nmajor:
        E(f"    s_mov_b32 s22, {(1<<32)//n_mb + 1}")
        E("    s_mul_hi_u32 s24, s3, s22")
        E(f"    s_mul_i32 s23, s24, {n_mb}")
        E("    s_sub_u32 s23, s3, s23")
    else:
        E(f"    s_mov_b32 s22, {(1<<32)//n_nb + 1}")
        E("    s_mul_hi_u32 s23, s3, s22")
        E(f"    s_mul_i32 s24, s23, {n_nb}")
        E("    s_sub_u32 s24, s3, s24")
    E("    v_and_b32 v1, 63, v0")
    E("    v_lshrrev_b32 v2, 6, v0")
    E("    v_lshrrev_b32 v7, 5, v1")
    E("    v_readfirstlane_b32 s50, v2")
    E("    s_waitcnt lgkmcnt(0)")
    E("    s_lshl_b32 s51, s50, 10")
    stamp()

def dma(voff, srd_, soff, ldsimm):
    E(f"    s_add_u32 m0, s51, {ldsimm}")
    E("    s_nop 0")
    E(f"    buffer_load_dwordx4 {voff}, {srd_}, {soff} offen lds")

def wdma_voffset(dst, RB, ldw):
    if RB == 256:
        E("    v_lshrrev_b32 v12, 4, v1")
        E("    v_lshl_add_u32 v13, v2, 2, v12")
        E(f"    s_mov_b32 s48, {ldw}")
        E("    v_mul_lo_u32 v13, v13, s48")
        E("    v_bfe_u32 v14, v1, 2, 2")
        E("    v_xor_b32 v14, v14, v12")
        E("    v_lshl_add_u32 v13, v14, 6, v13")
        E("    v_and_b32 v14, 3, v1")
        E(f"    v_lshl_add_u32 v{dst}, v14, 4, v13")
        return 32
    else:
        E("    v_lshrrev_b32 v12, 3, v1")
        E("    v_lshl_add_u32 v13, v2, 3, v12")
        E(f"    s_mov_b32 s48, {ldw}")
        E("    v_mul_lo_u32 v13, v13, s48")
        E("    v_bfe_u32 v14, v1, 2, 1")
        E("    v_bfe_u32 v15, v1, 4, 1")
        E("    v_xor_b32 v14, v14, v15")
        E("    v_lshl_add_u32 v13, v14, 6, v13")
        E("    v_and_b32 v14, 3, v1")
        E(f"    v_lshl_add_u32 v{dst}, v14, 4, v13")
        return 64

def tr_base(dst, RB, base_imm, krow_v=None):
    E("    v_bfe_u32 v8, v1, 2, 2")
    E(f"    v_lshl_add_u32 v{dst}, v7, 3, v8")
    if krow_v is not None:
        E(f"    v_lshl_add_u32 v{dst}, v{krow_v}, 4, v{dst}")
    E(f"    v_lshlrev_b32 v{dst}, {RB.bit_length()-1}, v{dst}")
    E("    v_bfe_u32 v10, v1, 4, 1")
    E(f"    v_lshl_add_u32 v{dst}, v10, 5, v{dst}")
    E("    v_and_b32 v10, 3, v1")
    E(f"    v_lshl_add_u32 v{dst}, v10, 3, v{dst}")
    E(f"    v_add_u32 v{dst}, {base_imm}, v{dst}")
    if RB == 128:
        E("    v_bfe_u32 v8, v1, 3, 1")

def xfull_dma(nrows, vm, name):
    nwv = nrows // 16
    if nwv < NW:
        E(f"    s_cmp_ge_u32 s50, {nwv}")
        E(f"    s_cbranch_scc1 {name}_xskip")
    E("    s_mul_i32 s52, s50, 14336")
    for i in range(14):
        E(f"    v_add_u32 v12, {64*i}, v1")
        div_const(13, 12, 56, 64*14, 48)
        E("    v_mul_u32_u24 v14, 56, v13")
        E("    v_sub_u32 v14, v12, v14")
        E("    v_bfe_u32 v15, v13, 1, 3")
        E("    v_xor_b32 v14, v14, v15")
        E("    v_lshl_add_u32 v13, v2, 4, v13")
        E("    v_mul_u32_u24 v13, 896, v13")
        E("    v_lshl_add_u32 v13, v14, 4, v13")
        E("    v_add_u32 v13, s26, v13")
        E(f"    s_add_u32 m0, s52, {1024*i}")
        E("    s_nop 0")
        E("    buffer_load_dwordx4 v13, s[28:31], 0 offen lds")
    if nwv < NW:
        E(f"{name}_xskip:")
    vm.issue('x', 14)
    return nrows * 896

def xfrag_addrs(XA, rowv):
    E(f"    v_mul_u32_u24 v9, 896, v{rowv}")
    E(f"    v_bfe_u32 v8, v{rowv}, 1, 3")
    for t in range(4):
        E(f"    v_add_u32 v10, {2*t}, v7")
        E("    v_xor_b32 v10, v10, v8")
        E(f"    v_lshl_add_u32 v{XA+t}, v10, 4, v9")

def layernorm_stats(XB, n, RS_, MR_):
    E("    s_mov_b32 s26, 0x3f803f80")
    for r in (9, 10, 11, 13):
        E(f"    v_mov_b32 v{r}, 0")
    for i in range(n):
        E(f"    v_dot2_f32_bf16 v{9 + (i&1)}, v{XB+i}, s26, v{9 + (i&1)}")
        E(f"    v_dot2_f32_bf16 v{11 if i&1 else 13}, v{XB+i}, v{XB+i}, v{11 if i&1 else 13}")
    E("    s_nop 3")
    E("    v_add_f32 v9, v9, v10")
    E("    v_add_f32 v11, v11, v13")
    E("    v_xor_b32 v12, 32, v1")
    E("    v_lshlrev_b32 v12, 2, v12")
    E("    ds_bpermute_b32 v10, v12, v9")
    E("    ds_bpermute_b32 v13, v12, v11")
    E("    s_waitcnt lgkmcnt(0)")
    E("    v_add_f32 v9, v9, v10")
    E("    v_add_f32 v11, v11, v13")
    E(f"    v_mul_f32 v9, {1.0/D!r}, v9")
    E(f"    v_mul_f32 v11, {1.0/D!r}, v11")
    E("    v_fma_f32 v11, -v9, v9, v11")
    E("    v_max_f32 v11, 0, v11")
    E(f"    v_add_f32 v11, {1e-5!r}, v11")
    E(f"    v_rsq_f32 v{RS_}, v11")
    E("    s_nop 0")
    E(f"    v_mul_f32 v{MR_}, v9, v{RS_}")

def norm_ops(XB, ks, RS_, MR_):
    ops = []
    for i in range(4*ks, 4*ks+4):
        ops.append(f"    v_lshlrev_b32 v10, 16, v{XB+i}")
        ops.append(f"    v_and_b32 v11, 0xffff0000, v{XB+i}")
        ops.append(f"    v_fma_f32 v10, v10, v{RS_}, -v{MR_}")
        ops.append(f"    v_fma_f32 v11, v11, v{RS_}, -v{MR_}")
        ops.append(f"    v_cvt_pk_bf16_f32 v{XB+i}, v10, v11")
    ops.append("    s_nop 1")
    return ops

def coop_ln(name, nrows):
    if nrows * 4 < 512:
        E(f"    s_cmp_ge_u32 s50, {nrows*4//64}")
        E(f"    s_cbranch_scc1 {name}_lnskip")
    E("    v_lshrrev_b32 v9, 2, v0")
    E("    v_and_b32 v10, 3, v0")
    E("    v_bfe_u32 v8, v9, 1, 3")
    E("    v_mul_u32_u24 v9, 896, v9")
    for i in range(14):
        E(f"    v_add_u32 v11, {4*i}, v10")
        E("    v_xor_b32 v11, v11, v8")
        E(f"    v_lshl_add_u32 v{72+i}, v11, 4, v9")
        E(f"    ds_read_b128 v[{16+4*i}:{19+4*i}], v{72+i}")
    if os.environ.get("LNST"): stamp()
    E("    s_mov_b32 s26, 0x3f803f80")
    for r in (12, 13, 14, 15):
        E(f"    v_mov_b32 v{r}, 0")
    for i in range(14):
        E(f"    s_waitcnt lgkmcnt({13-i})")
        for e in range(4):
            r = 16 + 4*i + e
            E(f"    v_dot2_f32_bf16 v{12 + (e&1)}, v{r}, s26, v{12 + (e&1)}")
            E(f"    v_dot2_f32_bf16 v{14 + (e&1)}, v{r}, v{r}, v{14 + (e&1)}")
    E("    s_nop 3")
    E("    v_add_f32 v12, v12, v13")
    E("    v_add_f32 v14, v14, v15")
    E("    s_nop 1")
    E("    v_add_f32_dpp v12, v12, v12 quad_perm:[1,0,3,2] row_mask:0xf bank_mask:0xf")
    E("    v_add_f32_dpp v14, v14, v14 quad_perm:[1,0,3,2] row_mask:0xf bank_mask:0xf")
    E("    s_nop 1")
    E("    v_add_f32_dpp v12, v12, v12 quad_perm:[2,3,0,1] row_mask:0xf bank_mask:0xf")
    E("    v_add_f32_dpp v14, v14, v14 quad_perm:[2,3,0,1] row_mask:0xf bank_mask:0xf")
    E(f"    v_mul_f32 v12, {1.0/D!r}, v12")
    E(f"    v_mul_f32 v14, {1.0/D!r}, v14")
    E("    v_fma_f32 v14, -v12, v12, v14")
    E("    v_max_f32 v14, 0, v14")
    E(f"    v_add_f32 v14, {1e-5!r}, v14")
    E("    v_rsq_f32 v15, v14")
    E("    s_nop 0")
    E("    v_mul_f32 v14, v12, v15")
    if os.environ.get("LNST"): stamp()
    E("    v_mov_b32 v88, v15")
    E("    v_mov_b32 v89, v15")
    E("    v_sub_f32 v90, 0, v14")
    E("    v_sub_f32 v91, 0, v14")
    for i in range(14):
        for e in range(4):
            r = 16 + 4*i + e
            t = 92 + 2*(e & 1)
            E(f"    v_lshlrev_b32 v{t}, 16, v{r}")
            E(f"    v_and_b32 v{t+1}, 0xffff0000, v{r}")
            E(f"    v_pk_fma_f32 v[{t}:{t+1}], v[{t}:{t+1}], v[88:89], v[90:91]")
            E(f"    v_cvt_pk_bf16_f32 v{r}, v{t}, v{t+1}")
        E(f"    ds_write_b128 v{72+i}, v[{16+4*i}:{19+4*i}]")
    if nrows * 4 < 512:
        E(f"{name}_lnskip:")
    if os.environ.get("LNST"): stamp()
    E("    s_waitcnt lgkmcnt(0)")
    E("    s_barrier")

def prefetch(pf, nwg):
    if not pf: return
    nper = nwg // 8
    E("    s_lshr_b32 s52, s2, 3")
    E("    s_and_b32 s53, s2, 7")
    for (key, kind) in pf:
        mk(56, key)
        size = PTR[key][2]
        if kind == 'all':
            lines = size // 128
            per = -(-lines // nper)
            n = -(-per // 512)
            E(f"    s_mul_i32 s54, s52, {per*128}")
            E("    v_lshlrev_b32 v9, 7, v0")
            for i in range(n):
                E(f"    s_add_u32 s55, s54, {i*512*128}")
                E("    buffer_load_dword v15, v9, s[56:59], s55 offen")
        else:
            E("    s_mul_i32 s54, s53, 28")
            E("    s_lshr_b32 s54, s54, 4")
            E("    s_lshl_b32 s54, s54, 8")
            E(f"    s_mul_i32 s55, s52, {16*3584}")
            E("    s_add_u32 s54, s54, s55")
            div_const(9, 0, 6, 512, 55)
            E("    v_mul_u32_u24 v10, 6, v9")
            E("    v_sub_u32 v10, v0, v10")
            E("    v_mul_u32_u24 v9, 3584, v9")
            E("    v_lshl_add_u32 v9, v10, 7, v9")
            E("    v_cmp_gt_u32 vcc, 96, v0")
            E("    s_and_saveexec_b64 s[92:93], vcc")
            E("    buffer_load_dword v15, v9, s[56:59], s54 offen")
            E("    s_mov_b64 exec, s[92:93]")

XB = 16
DEPTH = 6
WF = XB + 112
TMPB = WF + DEPTH*4
MFMA = "v_mfma_f32_32x32x16_bf16"

def mainloop_fullx(nchunks, ksc, R, stage, vm, units_of, ln, RS_, MR_, nfill=3, staged0=0):
    fill = []
    nxt = [staged0]
    units = []
    for c in range(nchunks):
        for uu in units_of(c):
            units.append((c,) + uu)
    n = len(units)
    def rd(u):
        c, ks, av, off, a, RB = units[u]
        r = WF + (u % DEPTH)*4
        if os.environ.get("NOREAD"): return
        E(f"    ds_read_b64_tr_b16 v[{r}:{r+1}], v{av} offset:{off}")
        E(f"    ds_read_b64_tr_b16 v[{r+2}:{r+3}], v{av} offset:{off + 4*RB}")
    for u in range(DEPTH-1):
        rd(u)
    while nxt[0] < nchunks and nxt[0] <= R - 1:
        stage(nxt[0]); nxt[0] += 1
    lastks = None
    for u in range(n):
        c, ks, av, off, a, RB = units[u]
        if ln and ks != lastks:
            while fill: E(fill.pop(0))
            if ks + 1 < 28 and not os.environ.get("NOFILL"):
                fill.extend(norm_ops(XB, ks + 1, RS_, MR_))
            lastks = ks
        if u + DEPTH - 1 < n:
            rd(u + DEPTH - 1)
            left = DEPTH - 1
        else:
            left = n - 1 - u
        E(f"    s_waitcnt lgkmcnt({2*left})")
        r = WF + (u % DEPTH)*4
        xr = XB + ks*4
        if not os.environ.get("NOMFMA"):
            E(f"    {MFMA} a[{a*16}:{a*16+15}], v[{r}:{r+3}], v[{xr}:{xr+3}], a[{a*16}:{a*16+15}]")
        for _ in range(nfill):
            if fill: E(fill.pop(0))
        if u + 1 < n and units[u+1][0] != c:
            lst = os.environ.get("LOOPST") and c in (5, 6)
            if lst: stamp()
            if c + 2 < nchunks:
                vm.wait(('w', c+2))
            if lst: stamp()
            E("    s_barrier")
            if lst: stamp()
            while nxt[0] < nchunks and nxt[0] <= c + R:
                stage(nxt[0]); nxt[0] += 1

def gen_k3():
    name = "k3_gu_kernel"
    NROWS = 128
    n_mb, n_nb = 16, 14
    nwg = n_mb * n_nb
    KC, R, RB = 32, 10, 256
    nchunks = 448 // KC
    wsrcb = KC * RB
    bufb = 2 * wsrcb
    vm = VM()
    WA, XA, WG, RS_, MR_, EW = TMPB, TMPB+6, TMPB+10, TMPB+11, TMPB+12, TMPB+13
    T = TMPB + 14
    def slot(c):
        sl = c % R
        if sl < 3: return 0, sl*bufb, 114688 + sl*bufb
        if sl < 7: return 1, (sl-3)*bufb, (sl-3)*bufb
        return 2, (sl-7)*bufb, 65536 + (sl-7)*bufb
    ACC0 = 192
    prologue(name, nwg, n_mb, n_nb, True)
    mk(28, 'h'); mk(32, 'wg'); mk(36, 'wu'); mk(40, 'act')
    E("    v_and_b32 v3, 3, v2")
    E("    v_lshrrev_b32 v4, 2, v2")
    E("    s_lshl_b32 s25, s23, 7")
    E("    s_mul_i32 s26, s25, 896")
    E("    s_lshl_b32 s27, s24, 8")
    XOFF = xfull_dma(128, vm, name)
    stamp()
    rpi = wdma_voffset(WG, RB, F*2)
    E(f"    v_add_u32 v{WG}, s27, v{WG}")
    LINW = os.environ.get("LINW")
    if LINW:
        E(f"    v_lshlrev_b32 v{WG}, 4, v0")
        E(f"    s_mul_i32 s27, s24, {14*8192}")
        E(f"    v_add_u32 v{WG}, s27, v{WG}")
    def stage(c):
        b = slot(c)[2]
        for si in range(2):
            E(f"    s_mov_b32 s48, {c*8192 if LINW else c*KC*F*2}")
            dma(f"v{WG}", f"s[{32+4*si}:{35+4*si}]", "s48", b + si*wsrcb)
        vm.issue(('w', c), 2)
    for c in range(3):
        stage(c)
    E("    v_and_b32 v5, 31, v1")
    E("    v_lshl_add_u32 v5, v3, 5, v5")
    tr_base(9, RB, 0)
    for j in range(2):
        E(f"    v_lshl_add_u32 v10, v4, 1, {j}")
        E("    v_xor_b32 v10, v10, v8")
        E(f"    v_lshl_add_u32 v{WA+2+j}, v10, 6, v9")
        E(f"    v_add_u32 v{WA+j}, {XOFF}, v{WA+2+j}")
        E(f"    v_add_u32 v{WA+4+j}, 65536, v{WA+2+j}")
    xfrag_addrs(XA, 5)
    for r in range(64):
        E(f"    v_accvgpr_write_b32 a{r}, 0")
    vm.wait('x')
    stamp()
    if os.environ.get("LNST"): stamp()
    if os.environ.get("LN2X"):
        E("    s_mov_b32 s86, 0")
        E(f"{name}_ln2x:")
        stamp()
    coop_ln(name, NROWS)
    if os.environ.get("LN2X"):
        E("    s_add_u32 s86, s86, 1")
        E("    s_cmp_lt_u32 s86, 2")
        E(f"    s_cbranch_scc1 {name}_ln2x")
    stamp()
    for s in range(28):
        E(f"    ds_read_b128 v[{XB+4*s}:{XB+4*s+3}], v{XA + (s&3)} offset:{128*(s>>2)}")
    E("    s_waitcnt lgkmcnt(0)")
    stamp()
    vm.wait(('w', 1))
    E("    s_barrier")
    stamp()
    def units_of(c):
        rs, b, _ = slot(c)
        return [(c*2 + s, WA + 2*rs + j, b + s*16*RB + si*wsrcb, si*2 + j, RB)
                for s in range(2) for si in range(2) for j in range(2)]
    mainloop_fullx(nchunks, 2, R, stage, vm, units_of, False, RS_, MR_, nfill=6, staged0=3)
    stamp()
    prefetch([('wd', 'all')], nwg)
    E("    s_nop 15")
    E("    s_barrier")
    RS = 144
    E(f"    v_mul_u32_u24 v{EW}, {32*RS}, v2")
    E("    v_and_b32 v11, 31, v1")
    E(f"    v_mul_u32_u24 v11, {RS}, v11")
    E(f"    v_add_u32 v{EW}, v{EW}, v11")
    E(f"    v_lshl_add_u32 v{EW}, v7, 3, v{EW}")
    for jj in range(2):
        for q in range(4):
            jg, ju = jj, 2 + jj
            TT = T + 12*(q & 1)
            for r in range(4):
                E(f"    v_accvgpr_read_b32 v{TT+r}, a{jg*16 + 4*q+r}")
            for r in range(4):
                E(f"    v_accvgpr_read_b32 v{TT+8+r}, a{ju*16 + 4*q+r}")
            for r in range(4):
                E(f"    v_mul_f32 v{TT+4+r}, 0xbfb8aa3b, v{TT+r}")
            for r in range(4):
                E(f"    v_exp_f32 v{TT+4+r}, v{TT+4+r}")
            for r in range(4):
                E(f"    v_mul_f32 v{TT+r}, v{TT+r}, v{TT+8+r}")
            for r in range(4):
                E(f"    v_add_f32 v{TT+4+r}, 1.0, v{TT+4+r}")
            for r in range(4):
                E(f"    v_rcp_f32 v{TT+4+r}, v{TT+4+r}")
            E("    s_nop 0")
            for r in range(4):
                E(f"    v_mul_f32 v{TT+r}, v{TT+r}, v{TT+4+r}")
            E(f"    v_cvt_pk_bf16_f32 v{TT+4}, v{TT}, v{TT+1}")
            E(f"    v_cvt_pk_bf16_f32 v{TT+5}, v{TT+2}, v{TT+3}")
            E(f"    ds_write_b64 v{EW}, v[{TT+4}:{TT+5}] offset:{jj*64 + q*16}")
    E("    v_lshrrev_b32 v11, 3, v1")
    E("    v_and_b32 v12, 7, v1")
    E(f"    v_mul_u32_u24 v13, {32*RS}, v2")
    E(f"    v_mul_u32_u24 v14, {RS}, v11")
    E("    v_add_u32 v13, v13, v14")
    E("    v_lshl_add_u32 v13, v12, 4, v13")
    E("    v_lshl_add_u32 v14, v3, 5, v11")
    E("    v_add_u32 v14, s25, v14")
    E(f"    s_mov_b32 s26, {F*2}")
    E("    v_mul_lo_u32 v14, v14, s26")
    E("    v_lshl_add_u32 v14, v12, 4, v14")
    E("    v_lshl_add_u32 v14, v4, 7, v14")
    E("    v_add_u32 v14, s27, v14")
    E("    s_waitcnt lgkmcnt(0)")
    for i in range(4):
        E(f"    ds_read_b128 v[{XB+4*i}:{XB+4*i+3}], v13 offset:{i*8*RS}")
    for i in range(4):
        E(f"    s_waitcnt lgkmcnt({3-i})")
        E(f"    s_mov_b32 s48, {i*8*F*2}")
        E(f"    buffer_store_dwordx4 v[{XB+4*i}:{XB+4*i+3}], v14, s[40:43], s48 offen")
    stamp_dump()
    E(f"{name}_done:")
    E("    s_endpgm")
    kernel_desc(name, ACC0 + 64, ACC0)
    return name, nwg, XOFF + 3*bufb

QS = 400
def gen_k1():
    name = "k1_qkv_kernel"
    NROWS = 96
    n_mb, n_nb = 32, 8
    nwg = n_mb * n_nb
    KC, R, RB = 64, 6, 128
    nchunks = 448 // KC
    wsrcb = KC * RB
    bufb = 3 * wsrcb
    vm = VM()
    WA, XA, WG, RS_, MR_ = TMPB, TMPB+6, TMPB+10, TMPB+11, TMPB+12
    T = TMPB + 14
    def slot(c):
        sl = c % R
        if sl < 3: return 0, sl*bufb, 90112 + sl*bufb
        return 1, (sl-3)*bufb, (sl-3)*bufb
    ACC0 = 192
    prologue(name, nwg, n_mb, n_nb, False)
    mk(28, 'x'); mk(32, 'wqkv'); mk(40, 'o')
    E("    v_add_u32 v12, 1, v2")
    E("    v_mul_u32_u24 v3, 43, v12")
    E("    v_lshrrev_b32 v3, 7, v3")
    E("    v_mul_u32_u24 v4, 3, v3")
    E("    v_sub_u32 v4, v12, v4")
    E("    s_lshl_b32 s25, s23, 6")
    E("    s_sub_i32 s25, s25, 32")
    E("    s_mul_i32 s26, s25, 896")
    E("    s_mul_i32 s27, s24, 112")
    XOFF = xfull_dma(96, vm, name); XOFF = 90112
    stamp()
    rpi = wdma_voffset(WG, RB, NQKV*2)
    E(f"    v_add_u32 v{WG}, s27, v{WG}")
    def stage(c):
        b = slot(c)[2]
        for si in range(3):
            E(f"    s_mov_b32 s48, {c*KC*NQKV*2 + si*896}")
            dma(f"v{WG}", "s[32:35]", "s48", b + si*wsrcb)
        vm.issue(('w', c), 3)
    for c in range(3):
        stage(c)
    E("    v_and_b32 v5, 31, v1")
    E("    v_lshl_add_u32 v5, v3, 5, v5")
    tr_base(9, RB, 0)
    E(f"    v_mul_u32_u24 v11, {wsrcb}, v4")
    E("    v_add_u32 v9, v9, v11")
    for j in range(2):
        E(f"    v_xor_b32 v10, {j}, v8")
        E(f"    v_lshl_add_u32 v{WA+2+j}, v10, 6, v9")
        E(f"    v_add_u32 v{WA+j}, {XOFF}, v{WA+2+j}")
    xfrag_addrs(XA, 5)
    for r in range(32):
        E(f"    v_accvgpr_write_b32 a{r}, 0")
    vm.wait('x')
    stamp()
    if os.environ.get("LNST"): stamp()
    if os.environ.get("LN2X"):
        E("    s_mov_b32 s86, 0")
        E(f"{name}_ln2x:")
        stamp()
    coop_ln(name, NROWS)
    if os.environ.get("LN2X"):
        E("    s_add_u32 s86, s86, 1")
        E("    s_cmp_lt_u32 s86, 2")
        E(f"    s_cbranch_scc1 {name}_ln2x")
    stamp()
    for s in range(28):
        E(f"    ds_read_b128 v[{XB+4*s}:{XB+4*s+3}], v{XA + (s&3)} offset:{128*(s>>2)}")
    E("    s_waitcnt lgkmcnt(0)")
    stamp()
    vm.wait(('w', 1))
    E("    s_barrier")
    stamp()
    def units_of(c):
        rs, b, _ = slot(c)
        return [(c*4 + s, WA + 2*rs + j, b + s*16*RB, j, RB) for s in range(4) for j in range(2)]
    mainloop_fullx(nchunks, 4, R, stage, vm, units_of, False, RS_, MR_, nfill=11, staged0=3)
    stamp()
    prefetch([('wo', 'all')], nwg)
    E("    s_nop 15")
    E("    s_barrier")
    E(f"    v_mul_u32_u24 v10, {QS}, v5")
    E("    v_lshl_add_u32 v10, v7, 3, v10")
    E("    v_lshl_add_u32 v10, v4, 7, v10")
    for j in range(2):
        for q in range(4):
            for r in range(4):
                E(f"    v_accvgpr_read_b32 v{T+r}, a{j*16 + 4*q+r}")
            E(f"    v_cvt_pk_bf16_f32 v{T+4}, v{T}, v{T+1}")
            E(f"    v_cvt_pk_bf16_f32 v{T+5}, v{T+2}, v{T+3}")
            E(f"    ds_write_b64 v10, v[{T+4}:{T+5}] offset:{j*64 + q*16}")
    E("    s_waitcnt lgkmcnt(0)")
    E("    s_barrier")
    stamp()
    E("    v_lshrrev_b32 v3, 3, v0")
    E("    v_bfe_u32 v4, v0, 2, 1")
    E("    v_mul_u32_u24 v4, 56, v4")
    E("    v_and_b32 v11, 3, v0")
    E("    v_add_u32 v5, 32, v3")
    E(f"    v_mul_u32_u24 v5, {QS}, v5")
    E("    v_add_u32 v5, v5, v4")
    for i in range(7):
        E(f"    ds_read_b64 v[{16+2*i}:{17+2*i}], v5 offset:{8*i}")
    E(f"    v_mul_u32_u24 v6, {4*QS}, v11")
    E("    v_sub_u32 v6, v5, v6")
    E(f"    v_subrev_u32 v6, {2*QS}, v6")
    KB = 64
    for w in range(2):
        for i in range(7):
            r = KB + w*14 + 2*i
            E(f"    ds_read_b64 v[{r}:{r+1}], v6 offset:{(2-2*w)*QS + 128 + 8*i}")
    VB = 96
    for w in range(2):
        for i in range(7):
            r = VB + w*14 + 2*i
            E(f"    ds_read_b64 v[{r}:{r+1}], v6 offset:{(2-2*w)*QS + 256 + 8*i}")
    E("    s_lshl_b32 s26, s23, 6")
    E("    v_add_u32 v3, s26, v3")
    E("    v_lshlrev_b32 v12, 2, v11")
    E("    v_sub_u32 v12, v3, v12")
    E("    v_mov_b32 v48, 0")
    E("    v_mov_b32 v49, 0")
    E("    s_waitcnt lgkmcnt(14)")
    for i in range(14):
        for w in range(2):
            E(f"    v_dot2_f32_bf16 v{48+w}, v{KB + w*14 + i}, v{16+i}, v{48+w}")
    E("    v_mov_b32 v8, 0xce6e6b28")
    E("    s_nop 2")
    for w in range(2):
        E(f"    v_mul_f32 v{48+w}, {28**-0.5!r}, v{48+w}")
        E(f"    v_cmp_gt_i32 vcc, {2*w}, v12")
        E("    s_nop 1")
        E(f"    v_cndmask_b32 v{48+w}, v{48+w}, v8, vcc")
    E("    v_max_f32 v56, v48, v49")
    E("    s_nop 1")
    E("    v_max_f32_dpp v56, v56, v56 quad_perm:[1,0,3,2] row_mask:0xf bank_mask:0xf")
    E("    s_nop 1")
    E("    v_max_f32_dpp v56, v56, v56 quad_perm:[2,3,0,1] row_mask:0xf bank_mask:0xf")
    for w in range(2):
        E(f"    v_sub_f32 v{48+w}, v{48+w}, v56")
        E(f"    v_mul_f32 v{48+w}, 0x3fb8aa3b, v{48+w}")
        E(f"    v_exp_f32 v{48+w}, v{48+w}")
    E("    s_nop 0")
    E("    v_add_f32 v57, v48, v49")
    E("    s_nop 1")
    E("    v_add_f32_dpp v57, v57, v57 quad_perm:[1,0,3,2] row_mask:0xf bank_mask:0xf")
    E("    s_nop 1")
    E("    v_add_f32_dpp v57, v57, v57 quad_perm:[2,3,0,1] row_mask:0xf bank_mask:0xf")
    E("    v_rcp_f32 v57, v57")
    E("    s_nop 0")
    for w in range(2):
        E(f"    v_mul_f32 v{48+w}, v{48+w}, v57")
    E("    s_waitcnt lgkmcnt(0)")
    for w in range(2):
        for i in range(14):
            r = VB + w*14 + i
            E(f"    v_lshlrev_b32 v8, 16, v{r}")
            E(f"    v_and_b32 v9, 0xffff0000, v{r}")
            if w == 0:
                E(f"    v_mul_f32 v{16+2*i}, v8, v{48+w}")
                E(f"    v_mul_f32 v{17+2*i}, v9, v{48+w}")
            else:
                E(f"    v_fmac_f32 v{16+2*i}, v8, v{48+w}")
                E(f"    v_fmac_f32 v{17+2*i}, v9, v{48+w}")
    E("    s_nop 1")
    for i in range(28):
        E(f"    v_add_f32_dpp v{16+i}, v{16+i}, v{16+i} quad_perm:[1,0,3,2] row_mask:0xf bank_mask:0xf")
    E("    s_nop 1")
    for i in range(28):
        E(f"    v_add_f32_dpp v{16+i}, v{16+i}, v{16+i} quad_perm:[2,3,0,1] row_mask:0xf bank_mask:0xf")
    for i in range(14):
        E(f"    v_cvt_pk_bf16_f32 v{64+i}, v{16+2*i}, v{17+2*i}")
    E("    v_mov_b32 v78, 0")
    E("    v_mov_b32 v79, 0")
    E(f"    v_mul_u32_u24 v5, {D*2}, v3")
    E("    v_add_u32 v5, v5, v4")
    E("    v_add_u32 v5, s27, v5")
    E("    v_lshl_add_u32 v5, v11, 4, v5")
    for k in range(1, 4):
        E(f"    v_cmp_eq_u32 vcc, {k}, v11")
        E("    s_nop 1")
        for i in range(4):
            E(f"    v_cndmask_b32 v{64+i}, v{64+i}, v{64+4*k+i}, vcc")
    E("    buffer_store_dwordx2 v[64:65], v5, s[40:43], 0 offen")
    E("    v_cmp_gt_u32 vcc, 3, v11")
    E("    s_and_saveexec_b64 s[92:93], vcc")
    E("    buffer_store_dwordx2 v[66:67], v5, s[40:43], 0 offen offset:8")
    E("    s_mov_b64 exec, s[92:93]")
    stamp_dump()
    E(f"{name}_done:")
    E("    s_endpgm")
    kernel_desc(name, ACC0 + 32, ACC0)
    return name, nwg, max(XOFF + 3*bufb, 96*QS)

def gen_ks(name, K, xsrc, x_ld, wkey, dst, res, pf):
    n_mb, n_nb = 32, 7
    nwg = n_mb * n_nb
    KC, R, RB = 64, 8, 128
    nchunks = K // KC
    R = min(R, nchunks)
    bufb = 16384
    vm = VM()
    WA, XA, WG, XG = 40, 44, 46, 47
    T = 100
    ACC0 = 128
    prologue(name, nwg, n_mb, n_nb, False)
    mk(28, xsrc); mk(32, wkey); mk(40, dst); mk(44, res)
    E("    v_and_b32 v3, 3, v2")
    E("    v_lshrrev_b32 v4, 2, v2")
    E("    s_lshl_b32 s25, s23, 6")
    E(f"    s_mul_i32 s26, s25, {x_ld}")
    E("    s_lshl_b32 s27, s24, 7")
    E("    v_lshrrev_b32 v12, 3, v1")
    E("    v_lshl_add_u32 v12, v2, 3, v12")
    E(f"    s_mov_b32 s48, {x_ld}")
    E("    v_mul_lo_u32 v12, v12, s48")
    E("    v_and_b32 v13, 1, v2")
    E("    v_lshlrev_b32 v13, 2, v13")
    E("    v_lshrrev_b32 v14, 4, v1")
    E("    v_add_u32 v13, v13, v14")
    E("    v_and_b32 v14, 7, v1")
    E("    v_xor_b32 v13, v13, v14")
    E(f"    v_lshl_add_u32 v{XG}, v13, 4, v12")
    E(f"    v_add_u32 v{XG}, s26, v{XG}")
    wdma_voffset(WG, RB, D*2)
    E(f"    v_add_u32 v{WG}, s27, v{WG}")
    def stage(c):
        b = (c % R) * bufb
        E(f"    s_mov_b32 s48, {c*KC*D*2}")
        dma(f"v{WG}", "s[32:35]", "s48", b)
        E(f"    s_mov_b32 s48, {c*KC*2}")
        dma(f"v{XG}", "s[28:31]", "s48", b + 8192)
        vm.issue(('w', c), 2)
    for c in range(R-1):
        stage(c)
    stamp()
    tr_base(9, RB, 0, krow_v=3)
    for j in range(2):
        E(f"    v_xor_b32 v10, {j}, v8")
        E(f"    v_lshl_add_u32 v{WA+j}, v10, 6, v9")
        E(f"    v_add_u32 v{WA+2+j}, 65536, v{WA+j}")
    E("    v_and_b32 v5, 31, v1")
    E("    v_lshl_add_u32 v5, v4, 5, v5")
    E("    v_lshlrev_b32 v9, 7, v5")
    E("    v_bfe_u32 v8, v5, 1, 3")
    E("    v_lshl_add_u32 v10, v3, 1, v7")
    E("    v_xor_b32 v10, v10, v8")
    E(f"    v_lshl_add_u32 v{XA}, v10, 4, v9")
    E(f"    v_add_u32 v{XA}, 8192, v{XA}")
    E(f"    v_add_u32 v{XA+1}, 65536, v{XA}")
    for r in range(32):
        E(f"    v_accvgpr_write_b32 a{r}, 0")
    vm.wait(('w', 2))
    E("    s_barrier")
    stamp()
    def rdc(c):
        hi, b = divmod((c % R) * bufb, 65536)
        rb = 16 + (c & 1) * 12
        E(f"    ds_read_b128 v[{rb}:{rb+3}], v{XA+hi} offset:{b}")
        for j in range(2):
            E(f"    ds_read_b64_tr_b16 v[{rb+4+4*j}:{rb+5+4*j}], v{WA+2*hi+j} offset:{b}")
            E(f"    ds_read_b64_tr_b16 v[{rb+6+4*j}:{rb+7+4*j}], v{WA+2*hi+j} offset:{b + 512}")
    rdc(0)
    nx = R - 1
    while nx < min(R, nchunks):
        stage(nx); nx += 1
    for c in range(nchunks):
        rb = 16 + (c & 1) * 12
        if c + 1 < nchunks:
            rdc(c + 1)
            E("    s_waitcnt lgkmcnt(7)")
        else:
            E("    s_waitcnt lgkmcnt(2)")
        E(f"    {MFMA} a[0:15], v[{rb+4}:{rb+7}], v[{rb}:{rb+3}], a[0:15]")
        E(f"    s_waitcnt lgkmcnt({5 if c + 1 < nchunks else 0})")
        E(f"    {MFMA} a[16:31], v[{rb+8}:{rb+11}], v[{rb}:{rb+3}], a[16:31]")
        if c + 1 < nchunks and (c & 1):
            vm.wait(('w', min(c+3, nchunks-1)))
            E("    s_barrier")
            while nx < nchunks and nx <= c + R:
                stage(nx); nx += 1
    stamp()
    prefetch(pf, nwg)
    E("    s_nop 15")
    E("    s_barrier")
    RS = 272
    WR = 64 * RS
    E(f"    v_mul_u32_u24 v10, {WR}, v3")
    E(f"    v_mul_u32_u24 v11, {RS}, v5")
    E("    v_add_u32 v10, v10, v11")
    E("    v_lshl_add_u32 v10, v7, 4, v10")
    for j in range(2):
        for q in range(4):
            for r in range(4):
                E(f"    v_accvgpr_read_b32 v{T+r}, a{j*16 + 4*q+r}")
            E(f"    ds_write_b128 v10, v[{T}:{T+3}] offset:{j*128 + q*32}")
    E("    v_lshrrev_b32 v11, 3, v1")
    E("    v_lshl_add_u32 v11, v2, 3, v11")
    E("    v_and_b32 v12, 7, v1")
    E(f"    v_mul_u32_u24 v13, {RS}, v11")
    E("    v_lshl_add_u32 v13, v12, 5, v13")
    E("    v_add_u32 v14, s25, v11")
    E(f"    s_mov_b32 s26, {D*2}")
    E("    v_mul_lo_u32 v14, v14, s26")
    E("    v_lshl_add_u32 v14, v12, 4, v14")
    E("    v_add_u32 v14, s27, v14")
    E("    buffer_load_dwordx4 v[80:83], v14, s[44:47], 0 offen")
    E("    s_waitcnt lgkmcnt(0)")
    E("    s_barrier")
    for w in range(4):
        E(f"    ds_read_b128 v[{48+8*w}:{51+8*w}], v13 offset:{w*WR}")
        E(f"    ds_read_b128 v[{52+8*w}:{55+8*w}], v13 offset:{w*WR + 16}")
    E("    s_waitcnt vmcnt(0) lgkmcnt(0)")
    for e in range(8):
        E(f"    v_add_f32 v{48+e}, v{48+e}, v{56+e}")
        E(f"    v_add_f32 v{64+e}, v{64+e}, v{72+e}")
        E(f"    v_add_f32 v{48+e}, v{48+e}, v{64+e}")
    for e in range(4):
        E(f"    v_lshlrev_b32 v{T}, 16, v{80+e}")
        E(f"    v_and_b32 v{T+1}, 0xffff0000, v{80+e}")
        E(f"    v_add_f32 v{T}, v{T}, v{48+2*e}")
        E(f"    v_add_f32 v{T+1}, v{T+1}, v{49+2*e}")
        E(f"    v_cvt_pk_bf16_f32 v{80+e}, v{T}, v{T+1}")
    E("    buffer_store_dwordx4 v[80:83], v14, s[40:43], 0 offen")
    stamp_dump()
    E(f"{name}_done:")
    E("    s_endpgm")
    kernel_desc(name, ACC0 + 32, ACC0)
    return name, nwg, max(R*bufb, 4*WR)

def main():
    E('.amdgcn_target "amdgcn-amd-amdhsa--gfx950"')
    E(".text")
    L = [gen_k1(),
         gen_ks("k2_wo_kernel", 448, 'o', D*2, 'wo', 'h', 'x', [('wg', 'gu'), ('wu', 'gu')]),
         gen_k3(),
         gen_ks("k4_down_kernel", 1792, 'act', F*2, 'wd', 'out', 'h', None)]
    hdr = open('sequential_preLN__sliding_local_dilated__swiglu_ffn__prompt.s.ref').read().split('\n')
    head = [l for l in hdr if l.startswith(';') and '@launch' not in l and 'Override launch' not in l and 'grid=ceil' not in l]
    for (nm, n, lds) in L:
        assert lds <= 163840, (nm, lds)
        head.append(f"; @launch kernel={nm} grid=({n},1,1) block=({64*NW},1,1) lds={lds}")
    txt = '\n'.join(head + out) + '\n'
    dst = sys.argv[1] if len(sys.argv) > 1 else 'sequential_preLN__sliding_local_dilated__swiglu_ffn__prompt.s'
    open(dst, 'w').write(txt)
    print("wrote", dst, len(txt), "bytes")

main()
```
